```python
import torch

def _softmax(x, axis=-1):
    return torch.softmax(x, dim=axis)
def _gelu(x):
    return torch.nn.functional.gelu(x, approximate="tanh")
def _silu(x):
    return torch.nn.functional.silu(x)
def _sigmoid(x):
    return torch.sigmoid(x)
def _layernorm(x, axis=-1, eps=1e-5):
    m = x.mean(dim=axis, keepdim=True)
    v = x.var(dim=axis, keepdim=True, unbiased=False)
    return (x - m) / torch.sqrt(v + eps)
def _scatter_add(tgt, idx, src, axis=0):
    return tgt.clone().index_add_(axis, idx, src)
def _segment_sum(src, seg, n):
    out = torch.zeros((n,) + src.shape[1:], dtype=src.dtype)
    return out.index_add_(0, seg, src)
def _pad(x, pw):
    flat = tuple(v for pair in reversed(pw) for v in pair)
    return torch.nn.functional.pad(x, flat)

kernel_name = 'parallel_sum__ssm_conv_s4__mixer_channel_mlp__prompt'

def setup_inputs():

    _w = (lambda a: (lambda t: t.to(torch.bfloat16) if t.is_floating_point() else t)(torch.as_tensor(a)))
    def _A_setup():
        B, L, D, N = 1, 2048, 448, 256
        A_re = -(lambda _x: torch.exp(torch.as_tensor(_x)))((lambda *s: torch.randn(*s, dtype=torch.bfloat16) * 3.2)(D, N))
        A_im = torch.pi * (lambda *s: torch.randn(*s, dtype=torch.bfloat16) * 0.05)(D, N)
        B_re = (lambda *s: torch.randn(*s, dtype=torch.bfloat16) * 0.1)(D, N)
        B_im = (lambda *s: torch.randn(*s, dtype=torch.bfloat16) * 0.1)(D, N)
        C_re = (lambda *s: torch.randn(*s, dtype=torch.bfloat16) * 0.1)(D, N)
        C_im = (lambda *s: torch.randn(*s, dtype=torch.bfloat16) * 0.1)(D, N)
        log_dt = (lambda *s: torch.randn(*s, dtype=torch.bfloat16) * 0.05)(D) * 0.5 - 4.0
        Dskip = (lambda *s: torch.randn(*s, dtype=torch.bfloat16) * 0.05)(D)
        return {
            "u": _w((lambda *s: torch.randn(*s, dtype=torch.bfloat16) * 0.05)(B, L, D)),
            "A_re": _w(A_re),
            "A_im": _w(A_im),
            "B_re": _w(B_re),
            "B_im": _w(B_im),
            "C_re": _w(C_re),
            "C_im": _w(C_im),
            "log_dt": _w(log_dt),
            "Dskip": _w(Dskip),
        }
    _A_in = _A_setup()

    def _B_setup():
        B, S, D, F = 1, 2048, 448, 1792
        return {
            "x": _w((lambda *s: torch.randn(*s, dtype=torch.bfloat16) * 0.05)(B, S, D)),
            "w1": _w((lambda *s: torch.randn(*s, dtype=torch.bfloat16) * 3.2)(D, F) * (D ** -0.5)),
            "b1": _w((lambda *s: torch.randn(*s, dtype=torch.bfloat16) * 0.8)(F)),
            "w2": _w((lambda *s: torch.randn(*s, dtype=torch.bfloat16) * 0.05)(F, D) * (F ** -0.5)),
            "b2": _w((lambda *s: torch.randn(*s, dtype=torch.bfloat16) * 0.05)(D)),
        }
    _B_in = _B_setup()

    return {
        "A_u": _A_in["u"],
        "A_A_re": _A_in["A_re"],
        "A_A_im": _A_in["A_im"],
        "A_B_re": _A_in["B_re"],
        "A_B_im": _A_in["B_im"],
        "A_C_re": _A_in["C_re"],
        "A_C_im": _A_in["C_im"],
        "A_log_dt": _A_in["log_dt"],
        "A_Dskip": _A_in["Dskip"],
        "B_x": _B_in["x"],
        "B_w1": _B_in["w1"],
        "B_b1": _B_in["b1"],
        "B_w2": _B_in["w2"],
        "B_b2": _B_in["b2"],
    }

def reference(A_u, A_A_re, A_A_im, A_B_re, A_B_im, A_C_re, A_C_im, A_log_dt, A_Dskip, B_x, B_w1, B_b1, B_w2, B_b2):
    def _A_ref(u, A_re, A_im, B_re, B_im, C_re, C_im, log_dt, Dskip):
        Bsz, L, D = u.shape
        dt = torch.exp(log_dt)[:, None]
        A = A_re + 1j * A_im
        Bc = B_re + 1j * B_im
        Cc = C_re + 1j * C_im
        logdA = dt * A
        dB = dt * Bc
        l = (lambda x, dt: x.to(dt))(torch.arange(L), A_re.dtype)
        P = torch.exp(logdA[:, :, None] * l[None, None, :])
        K = torch.einsum("dn,dnl,dn->dl", Cc, P, dB).real
        L2 = 2 * L
        Kp = _pad(K, ((0, 0), (0, L)))
        up = (lambda x, *d: x.permute(*d))(u, 0, 2, 1)
        up = _pad(up, ((0, 0), (0, 0), (0, L)))
        Kf = (lambda x, axes=(-2,-1): torch.fft.rfft2(x.float(), dim=axes))(Kp[:, None, :], axes=(-2, -1))
        Uf = (lambda x, axes=(-2,-1): torch.fft.rfft2(x.float(), dim=axes))(up[:, :, None, :], axes=(-2, -1))
        Yf = Uf * Kf[None, :, :, :]
        y = (lambda x, s, axes=(-2,-1): torch.fft.irfft2(x, s=s, dim=axes).to(torch.bfloat16))(Yf, (1, L2), axes=(-2, -1))[:, :, 0, :L]
        y = (lambda x, *d: x.permute(*d))(y, 0, 2, 1) + u * Dskip[None, None, :]
        return y

    def _B_ref(x, w1, b1, w2, b2):
        y = _layernorm(x, axis=-1)
        h = _gelu(torch.einsum("bsd,df->bsf", y, w1) + b1)
        return torch.einsum("bsf,fd->bsd", h, w2) + b2

    x = A_u
    xn = _layernorm(x, axis=-1)
    return x + _A_ref(xn, A_A_re, A_A_im, A_B_re, A_B_im, A_C_re, A_C_im, A_log_dt, A_Dskip) + _B_ref(xn, B_w1, B_b1, B_w2, B_b2)
```

```python
import struct
L = []
def e(s): L.append('    ' + s)
def lab(s): L.append(s + ':')
def f2u(x): return '0x%08x' % struct.unpack('<I', struct.pack('<f', x))[0]
LOG2E = 1.4426950408889634
Y2_OFF, UT_OFF, KG_OFF, H_OFF, AT_OFF = 0, 0x200000, 0x400000, 0x800000, 0x1000000
XB = 2048*448*2
KGC = 8320
def srd(d, b, size, off=0):
    if off:
        e(f's_add_u32 s{d}, s{b}, {hex(off)}'); e(f's_addc_u32 s{d+1}, s{b+1}, 0')
    else:
        e(f's_mov_b32 s{d}, s{b}'); e(f's_mov_b32 s{d+1}, s{b+1}')
    e(f's_mov_b32 s{d+2}, {hex(size)}'); e(f's_mov_b32 s{d+3}, 0x00020000')
def lo(d, p): e(f'v_lshlrev_b32 v{d}, 16, v{p}')
def hi(d, p): e(f'v_and_b32 v{d}, 0xffff0000, v{p}')
def pk(d, a, b): e(f'v_cvt_pk_bf16_f32 v{d}, {a if isinstance(a,str) else "v%d"%a}, {b if isinstance(b,str) else "v%d"%b}')
def kstart(name):
    L.append(f'.globl {name}'); L.append('.p2align 8'); L.append(f'.type {name},@function'); lab(name)

def allreduce16(v):
    for r in (8, 4, 2, 1):
        e('s_nop 1')
        e(f'v_add_f32_dpp v{v}, v{v}, v{v} row_ror:{r} row_mask:0xf bank_mask:0xf')
def ln(E, P, T):
    s0, s1, s2, s3, m, r, t0, t1 = [T+i for i in range(8)]
    acc = [s0, s1, s2, s3]
    for i in range(4): e(f'v_add_f32 v{acc[i]}, v{E+i}, v{E+4+i}')
    for i in range(8, 28): e(f'v_add_f32 v{acc[i%4]}, v{acc[i%4]}, v{E+i}')
    e(f'v_add_f32 v{s0}, v{s0}, v{s1}'); e(f'v_add_f32 v{s2}, v{s2}, v{s3}'); e(f'v_add_f32 v{s0}, v{s0}, v{s2}')
    allreduce16(s0)
    e(f'v_mul_f32 v{m}, {f2u(1/448)}, v{s0}')
    for i in range(28):
        t = t0 if i % 2 == 0 else t1
        e(f'v_sub_f32 v{t}, v{E+i}, v{m}')
        if i < 4: e(f'v_mul_f32 v{acc[i]}, v{t}, v{t}')
        else: e(f'v_fmac_f32 v{acc[i%4]}, v{t}, v{t}')
    e(f'v_add_f32 v{s0}, v{s0}, v{s1}'); e(f'v_add_f32 v{s2}, v{s2}, v{s3}'); e(f'v_add_f32 v{s0}, v{s0}, v{s2}')
    allreduce16(s0)
    e(f'v_mul_f32 v{s0}, {f2u(1/448)}, v{s0}')
    pk(s1, m, s0); lo(m, s1); hi(s0, s1)
    e(f'v_add_f32 v{s0}, {f2u(1e-5)}, v{s0}')
    pk(s1, s0, s0); lo(s0, s1)
    e(f'v_sqrt_f32 v{s0}, v{s0}'); e('s_nop 0')
    pk(s1, s0, s0); lo(s0, s1)
    e(f'v_rcp_f32 v{r}, v{s0}'); e('s_nop 0')
    for i in range(14):
        a, b = E+2*i, E+2*i+1
        e(f'v_sub_f32 v{a}, v{a}, v{m}'); e(f'v_sub_f32 v{b}, v{b}, v{m}')
        pk(P+i, a, b); lo(a, P+i); hi(b, P+i)
        e(f'v_mul_f32 v{a}, v{a}, v{r}'); e(f'v_mul_f32 v{b}, v{b}, v{r}')
        pk(P+i, a, b); lo(a, P+i); hi(b, P+i)

def role_ln():
    e('s_load_dwordx2 s[4:5], s[0:1], 0'); e('s_load_dwordx2 s[6:7], s[0:1], 128')
    e('v_lshrrev_b32 v1, 4, v0'); e('v_and_b32 v2, 15, v0')
    e('s_lshl_b32 s3, s2, 4')
    e('v_add_u32 v3, s3, v1'); e('v_mul_u32_u24 v3, 896, v3'); e('v_lshl_add_u32 v3, v2, 3, v3')
    e('v_sub_u32 v4, 15, v1'); e('v_mul_u32_u24 v4, 960, v4'); e('v_lshl_add_u32 v4, v2, 3, v4')
    e('s_waitcnt lgkmcnt(0)')
    srd(8, 4, XB); srd(12, 6, XB, Y2_OFF); srd(16, 6, XB, UT_OFF)
    R, E, T = 10, 24, 52
    for c in range(7): e(f'buffer_load_dwordx2 v[{R+2*c}:{R+2*c+1}], v3, s[8:11], 0 offen offset:{128*c}')
    e('v_and_b32 v5, 15, v0'); e('v_lshrrev_b32 v6, 2, v5'); e('v_mul_u32_u24 v6, 960, v6')
    e('v_and_b32 v7, 3, v0'); e('v_lshl_add_u32 v6, v7, 3, v6'); e('v_lshl_add_u32 v6, v1, 5, v6')
    e('s_lshl_b32 s20, s3, 1'); e('s_sub_u32 s20, 4064, s20')
    e('v_lshlrev_b32 v7, 12, v0'); e('v_add_u32 v7, s20, v7')
    for c in range(7):
        e(f's_waitcnt vmcnt({6-c})')
        lo(E+4*c, R+2*c); hi(E+4*c+1, R+2*c); lo(E+4*c+2, R+2*c+1); hi(E+4*c+3, R+2*c+1)
    ln(E, R, T)
    for c in range(7): e(f'ds_write_b64 v4, v[{R+2*c}:{R+2*c+1}] offset:{128*c}')
    P2 = 60
    ln(E, P2, T)
    for c in range(7): e(f'buffer_store_dwordx2 v[{P2+2*c}:{P2+2*c+1}], v3, s[12:15], 0 offen offset:{128*c}')
    e('s_waitcnt lgkmcnt(0)'); e('s_barrier')
    for k in range(4): e(f'ds_read_b64_tr_b16 v[{24+2*k}:{25+2*k}], v6 offset:{3840*k}')
    e('v_readfirstlane_b32 s21, v0')
    e('s_waitcnt lgkmcnt(0)')
    e('buffer_store_dwordx4 v[24:27], v7, s[16:19], 0 offen'); e('buffer_store_dwordx4 v[28:31], v7, s[16:19], 0 offen offset:16')
    e('s_cmp_ge_u32 s21, 192'); e('s_cbranch_scc1 L_prep_done')
    for k in range(4): e(f'ds_read_b64_tr_b16 v[{32+2*k}:{33+2*k}], v6 offset:{3840*k+512}')
    e('s_mov_b32 s22, 0x100000')
    e('s_waitcnt lgkmcnt(0)')
    e('buffer_store_dwordx4 v[32:35], v7, s[16:19], s22 offen'); e('buffer_store_dwordx4 v[36:39], v7, s[16:19], s22 offen offset:16')
    e('s_branch L_prep_done')

def cmul(dr, di, ar, ai, br, bi, t0, t1):
    e(f'v_mul_f32 v{t0}, v{ai}, v{bi}'); e(f'v_mul_f32 v{t1}, v{ai}, v{br}')
    e(f'v_fma_f32 v{dr}, v{ar}, v{br}, -v{t0}'); e(f'v_fma_f32 v{di}, v{ar}, v{bi}, v{t1}')
def cexp(dr, di, a2, ph, lam, t0, t1, t2):
    e(f'v_mul_f32 v{t0}, {f2u(float(lam))}, v{a2}'); e(f'v_mul_f32 v{t1}, {f2u(float(lam))}, v{ph}')
    e(f'v_exp_f32 v{t0}, v{t0}'); e(f'v_fract_f32 v{t1}, v{t1}')
    e(f'v_cos_f32 v{t2}, v{t1}'); e(f'v_sin_f32 v{t1}, v{t1}'); e('s_nop 0')
    e(f'v_mul_f32 v{dr}, v{t0}, v{t2}'); e(f'v_mul_f32 v{di}, v{t0}, v{t1}')
def role_kgen():
    e('s_load_dwordx8 s[4:11], s[0:1], 8'); e('s_load_dwordx4 s[12:15], s[0:1], 40')
    e('s_load_dwordx2 s[16:17], s[0:1], 56'); e('s_load_dwordx2 s[18:19], s[0:1], 128')
    e('s_sub_u32 s3, s2, 128')
    e('s_lshl_b32 s20, s3, 9'); e('v_lshl_add_u32 v1, v0, 1, s20')
    e('s_lshl_b32 s21, s3, 1'); e('v_mov_b32 v2, s21')
    e('s_waitcnt lgkmcnt(0)')
    for i in range(6):
        srd(24, 4+2*i, 448*256*2)
        e(f'buffer_load_ushort v{10+i}, v1, s[24:27], 0 offen')
        e('s_nop 0')
    srd(24, 16, 896); e('buffer_load_ushort v16, v2, s[24:27], 0 offen')
    srd(28, 18, 448*KGC, KG_OFF)
    e('v_lshrrev_b32 v3, 2, v0'); e('v_and_b32 v4, 3, v0'); e('v_lshlrev_b32 v4, 2, v4')
    for x in range(8):
        e(f'v_xor_b32 v5, {2*x}, v3'); e(f'v_lshl_add_u32 v{60+x}, v5, 4, v4')
    e('v_and_b32 v5, 15, v0'); e('v_bfe_u32 v6, v0, 4, 2')
    e('v_lshlrev_b32 v7, 1, v5'); e('v_and_b32 v7, 15, v7')
    e('v_lshrrev_b32 v8, 7, v0'); e('v_bfe_u32 v9, v0, 6, 1')
    e('v_lshl_add_u32 v8, v8, 4, v5'); e('v_lshlrev_b32 v8, 10, v8')
    e('v_lshl_add_u32 v17, v9, 4, v5'); e('v_add_u32 v17, 21, v17'); e('v_lshlrev_b32 v17, 10, v17')
    for s in range(4):
        e(f'v_or_b32 v18, {4*s}, v6'); e('v_xor_b32 v18, v18, v7')
        e(f'v_lshl_add_u32 v{70+s}, v18, 4, v8'); e(f'v_lshl_add_u32 v{74+s}, v18, 4, v17')
    e('v_lshl_add_u32 v78, v9, 4, v5'); e('v_lshlrev_b32 v78, 4, v78')
    e('v_readfirstlane_b32 s22, v0')
    e('v_cmp_eq_u32 s[32:33], 1, v6'); e('v_cmp_eq_u32 s[34:35], 2, v6'); e('v_cmp_eq_u32 s[36:37], 3, v6')
    DUM = 2304
    tab0 = [[r, 4+r, 256+2*r, 512+4*(r&1)+256*(r>>1)] for r in range(4)]
    tab1 = [[1024+256*r, 2048 if r == 0 else DUM, DUM, DUM] for r in range(4)]
    e('s_cmp_ge_u32 s22, 128')
    for r in range(4):
        for g in range(4): e(f's_cselect_b32 s{40+g}, {2*tab1[r][g]}, {2*tab0[r][g]}') if False else None
        for g in range(4):
            e(f's_mov_b32 s{44}, {2*tab0[r][g]}'); e(f's_cselect_b32 s{40+g}, {2*tab1[r][g]}, s44')
        e(f'v_mov_b32 v{80+r}, s40'); e('v_mov_b32 v18, s41'); e(f'v_cndmask_b32 v{80+r}, v{80+r}, v18, s[32:33]')
        e('v_mov_b32 v18, s42'); e(f'v_cndmask_b32 v{80+r}, v{80+r}, v18, s[34:35]')
        e('v_mov_b32 v18, s43'); e(f'v_cndmask_b32 v{80+r}, v{80+r}, v18, s[36:37]')
        e(f'v_add_u32 v{80+r}, v{80+r}, v78')
    e('s_waitcnt vmcnt(0)')
    for i in range(7): e(f'v_lshlrev_b32 v{10+i}, 16, v{10+i}')
    are, aim, bre, bim, cre, cim, ldt = range(10, 17)
    e(f'v_mul_f32 v{ldt}, {f2u(LOG2E)}, v{ldt}'); e(f'v_exp_f32 v{ldt}, v{ldt}'); e('s_nop 0')
    pk(18, ldt, ldt); lo(ldt, 18)
    for r in (are, aim, bre, bim): e(f'v_mul_f32 v{r}, v{ldt}, v{r}')
    a2, ph = 20, 21
    e(f'v_mul_f32 v{a2}, {f2u(LOG2E)}, v{are}'); e(f'v_mul_f32 v{ph}, 0.15915494, v{aim}')
    t0, t1, t2 = 22, 23, 24
    gr, gi = 26, 27
    cmul(gr, gi, cre, cim, bre, bim, t0, t1)
    E1, W, E256, E1024, E512, E768 = 28, 30, 32, 34, 36, 38
    cexp(W, W+1, a2, ph, 8, t0, t1, t2); cexp(E1, E1+1, a2, ph, 1, t0, t1, t2)
    cexp(E256, E256+1, a2, ph, 256, t0, t1, t2); cexp(E1024, E1024+1, a2, ph, 1024, t0, t1, t2)
    pkr = [25, 19]; cnt = [0]
    def put(row, m, r, i, neg):
        p = pkr[cnt[0] % 2]; cnt[0] += 1
        pk(p, r, ('-v%d' % i) if neg else i)
        e(f'ds_write_b32 v{60+(m%8)}, v{p} offset:{row*1024}')
    e('v_mov_b32 v40, 1.0'); e('v_mov_b32 v41, 0')
    put(21, 0, 40, 41, False); put(22, 1, W, W+1, False)
    cur = W
    bufs = [42, 44]
    for j in range(2, 32):
        n = bufs[j % 2]
        cmul(n, n+1, cur, cur+1, W, W+1, t0, t1); put(21+j, j, n, n+1, False); cur = n
    keep = {0: gr, 2: 46, 4: 48, 6: 50}
    put(0, 0, gr, gi, True); cur = gr
    for r in range(1, 8):
        n = keep[r] if r in keep else bufs[r % 2]
        cmul(n, n+1, cur, cur+1, E1, E1+1, t0, t1); put(r, r, n, n+1, True); cur = n
    cmul(E512, E512+1, E256, E256+1, E256, E256+1, t0, t1); cmul(E768, E768+1, E512, E512+1, E256, E256+1, t0, t1)
    lst = [(8, 0, E256), (9, 2, E256), (10, 4, E256), (11, 6, E256), (12, 0, E512), (13, 4, E512), (14, 0, E768), (15, 4, E768)]
    for k, (row, x, E) in enumerate(lst):
        n = bufs[k % 2]; cmul(n, n+1, keep[x], keep[x]+1, E, E+1, t0, t1); put(row, row, n, n+1, True)
    X1024 = 52
    cmul(X1024, X1024+1, gr, gi, E1024, E1024+1, t0, t1); put(16, 0, X1024, X1024+1, True)
    for k, (row, E) in enumerate([(17, E256), (18, E512), (19, E768), (20, E1024)]):
        n = bufs[k % 2]; cmul(n, n+1, X1024, X1024+1, E, E+1, t0, t1); put(row, row-16, n, n+1, True)
    e('s_waitcnt lgkmcnt(0)'); e('s_barrier')
    FB = 84
    def rd(s):
        b = FB + 8*(s % 4)
        e(f'ds_read_b128 v[{b}:{b+3}], v{70+s%4} offset:{(s>>2)*256}'); e(f'ds_read_b128 v[{b+4}:{b+7}], v{74+s%4} offset:{(s>>2)*256}')
    for s in range(3): rd(s)
    for s in range(16):
        if s+3 < 16: rd(s+3)
        e(f's_waitcnt lgkmcnt({2*min(3, 15-s)})')
        b = FB + 8*(s % 4)
        e(f'v_mfma_f32_16x16x32_bf16 v[{12}:{15}], v[{b}:{b+3}], v[{b+4}:{b+7}], ' + ('0' if s == 0 else 'v[12:15]'))
    def idx(base_v, A):
        for k in range(9):
            e(f'v_add_u32 v{A+k}, {k-7}, v{base_v}'); e(f'v_max_i32 v{A+k}, 0, v{A+k}'); e(f'v_cvt_f32_u32 v{A+k}, v{A+k}')
        for k in range(0, 9, 2):
            b = A+k+1 if k+1 < 9 else A+k
            pk(18, A+k, b); lo(A+k, 18)
            if k+1 < 9: hi(A+k+1, 18)
        for k in range(9):
            e(f'v_cvt_u32_f32 v{A+k}, v{A+k}'); e(f'v_lshlrev_b32 v{A+k}, 1, v{A+k}')
    e('v_lshlrev_b32 v3, 3, v0')
    idx(3, 26)
    e('s_barrier')
    pk(16, 12, 13); pk(17, 14, 15)
    e('ds_write_b16 v80, v16'); e('ds_write_b16_d16_hi v81, v16'); e('ds_write_b16 v82, v17'); e('ds_write_b16_d16_hi v83, v17')
    e('s_waitcnt lgkmcnt(0)'); e('s_barrier')
    e(f's_mul_i32 s20, s3, {KGC}')
    def expand(A, V, qv, first):
        for k in range(9): e(f'ds_read_u16 v{V+k}, v{A+k}')
        e('s_waitcnt lgkmcnt(0)')
        if first:
            e('v_cmp_eq_u32 vcc, 0, v0'); e('s_nop 1')
            for k in range(7): e(f'v_cndmask_b32 v{V+k}, v{V+k}, 0, vcc')
        for k in range(4): e(f'v_lshl_or_b32 v{V+12+k}, v{V+2*k+1}, 16, v{V+2*k}')
        for k in range(4): e(f'v_lshl_or_b32 v{V+16+k}, v{V+2*k+2}, 16, v{V+2*k+1}')
        e(f'buffer_store_dwordx4 v[{V+12}:{V+15}], v{qv}, s[28:31], s20 offen')
        e(f'buffer_store_dwordx4 v[{V+16}:{V+19}], v{qv}, s[28:31], s21 offen')
    e('s_add_u32 s21, s20, 4160')
    e('v_lshlrev_b32 v4, 4, v0')
    expand(26, 36, 4, True)
    e('s_cmp_ge_u32 s22, 64'); e('s_cbranch_scc1 L_prep_done')
    e('v_mov_b32 v3, 2048'); e('v_mov_b32 v4, 4096')
    idx(3, 26)
    e('v_cmp_eq_u32 vcc, 0, v0'); e('s_and_saveexec_b64 s[38:39], vcc')
    expand(26, 60, 4, False)

def kernel_prep():
    kstart('prep_kernel')
    e('s_cmp_ge_u32 s2, 576'); e('s_cbranch_scc1 L_prep_done')
    e('s_cmp_ge_u32 s2, 128'); e('s_cbranch_scc1 L_kgen')
    role_ln()
    lab('L_kgen')
    role_kgen()
    lab('L_prep_done')
    e('s_endpgm')

def dma_voffs(RSW, RSH, vW, vH, t):
    rl, ch, w16, a, b = t, t+1, t+2, t+3, t+4
    e(f'v_bfe_u32 v{rl}, v0, 3, 3'); e(f'v_and_b32 v{ch}, 7, v0'); e(f'v_lshrrev_b32 v{w16}, 6, v0'); e(f'v_lshl_add_u32 v{w16}, v{w16}, 4, v{rl}')
    e(f'v_bfe_u32 v{a}, v{rl}, 1, 1'); e(f'v_lshlrev_b32 v{a}, 2, v{a}'); e(f'v_xor_b32 v{a}, v{a}, v{ch}')
    e(f'v_mul_u32_u24 v{b}, {RSW}, v{w16}'); e(f'v_lshl_add_u32 v{vW}, v{a}, 4, v{b}')
    e(f'v_add_u32 v{vW+1}, {8*RSW-1024}, v{vW}')
    e(f'v_lshrrev_b32 v{a}, 1, v{rl}'); e(f'v_xor_b32 v{a}, v{a}, v{ch}')
    e(f'v_mul_u32_u24 v{b}, {RSH}, v{w16}'); e(f'v_lshl_add_u32 v{vH}, v{a}, 4, v{b}')
    e(f'v_xor_b32 v{a}, 4, v{a}'); e(f'v_lshl_add_u32 v{vH+1}, v{a}, 4, v{b}'); e(f'v_add_u32 v{vH+1}, {8*RSH-1024}, v{vH+1}')
def dma_tile(v, S, sbase, moff, ldsoff, sW, st):
    e(f's_add_u32 m0, s{sW}, {ldsoff}'); e(f's_add_u32 s{st}, s{sbase}, {moff}')
    e(f'buffer_load_dwordx4 v{v}, s[{S}:{S+3}], s{st} offen lds')
    e(f'buffer_load_dwordx4 v{v+1}, s[{S}:{S+3}], s{st} offen offset:1024 lds')
def frag_addrs(vA, nA, vB, mt0, nrow0, t):
    r, c, g, a, b = t, t+1, t+2, t+3, t+4
    e(f'v_bfe_u32 v{r}, v0, 2, 2'); e(f'v_and_b32 v{c}, 3, v0'); e(f'v_bfe_u32 v{g}, v0, 4, 1')
    e(f'v_lshrrev_b32 v{a}, 1, v{c}'); e(f'v_lshl_add_u32 v{a}, v{g}, 1, v{a}')
    e(f'v_bfe_u32 v{g}, v{r}, 1, 1'); e(f'v_lshl_or_b32 v{a}, v{g}, 2, v{a}')
    e(f'v_bfe_u32 v{g}, v0, 5, 1'); e(f'v_lshl_add_u32 v{b}, v{g}, 3, v{r}'); e(f'v_lshlrev_b32 v{b}, 7, v{b}')
    e(f'v_and_b32 v{c}, 1, v{c}'); e(f'v_lshl_add_u32 v{b}, v{c}, 3, v{b}')
    if mt0 is None:
        e(f'v_lshl_add_u32 v{vA}, v{a}, 4, v{b}'); e(f'v_xor_b32 v{vA+1}, 64, v{vA}')
    else:
        e(f'v_lshlrev_b32 v{c}, 2, v{mt0}'); e(f'v_xor_b32 v{a}, v{a}, v{c}'); e(f'v_lshl_add_u32 v{vA}, v{a}, 4, v{b}')
    e(f'v_and_b32 v{r}, 31, v0'); e(f'v_bfe_u32 v{a}, v{r}, 1, 3'); e(f'v_xor_b32 v{a}, v{a}, v{g}')
    if nrow0 is not None: e(f'v_add_u32 v{r}, v{r}, v{nrow0}')
    e(f'v_lshlrev_b32 v{r}, 7, v{r}')
    for s in range(4):
        e(f'v_xor_b32 v{c}, {2*s}, v{a}'); e(f'v_lshl_add_u32 v{vB+s}, v{c}, 4, v{r}')

GC0 = -2*LOG2E*0.7978845608028654
GC1 = GC0*0.044715
def role_gemm1():
    e('s_load_dwordx4 s[4:7], s[0:1], 80'); e('s_load_dwordx2 s[8:9], s[0:1], 128')
    e('s_and_b32 s20, s2, 7'); e('s_lshr_b32 s21, s2, 3')
    e('s_cmp_ge_u32 s21, 14'); e('s_cselect_b32 s22, 1, 0'); e('s_cselect_b32 s23, 14, 0')
    e('s_sub_u32 s21, s21, s23'); e('s_lshl_b32 s20, s20, 1'); e('s_add_u32 s20, s20, s22')
    e('s_lshl_b32 s24, s21, 8')
    e(f's_mul_i32 s25, s20, {128*896}')
    e('v_lshrrev_b32 v1, 6, v0'); e('s_nop 0'); e('v_readfirstlane_b32 s26, v1'); e('s_lshl_b32 s26, s26, 11')
    vW, vH = 2, 4
    dma_voffs(3584, 896, vW, vH, 10)
    e('v_lshrrev_b32 v20, 7, v0'); e('v_bfe_u32 v21, v0, 6, 1')
    vA, vBb, vB = 6, 16, 22
    frag_addrs(vA, 2, vBb, None, None, 10)
    e('v_lshlrev_b32 v10, 13, v20'); e(f'v_add_u32 v{vA}, v{vA}, v10'); e(f'v_add_u32 v{vA+1}, v{vA+1}, v10')
    e(f'v_add_u32 v{vA+2}, 0xc000, v{vA}'); e(f'v_add_u32 v{vA+3}, 0xc000, v{vA+1}')
    e('v_lshlrev_b32 v10, 13, v21')
    for s in range(4): e(f'v_add_u32 v{vBb+s}, v{vBb+s}, v10')
    e('v_bfe_u32 v10, v0, 5, 1')
    e('v_lshlrev_b32 v11, 7, v20'); e('v_lshl_add_u32 v26, v10, 3, v11'); e('v_add_u32 v26, s24, v26')
    e('v_and_b32 v12, 31, v0'); e('v_lshl_add_u32 v12, v21, 6, v12'); e('s_lshl_b32 s27, s20, 7'); e('v_add_u32 v12, s27, v12')
    e('v_mul_u32_u24 v12, 3584, v12'); e('v_lshl_add_u32 v27, v10, 4, v11'); e('v_add3_u32 v27, v27, v12, s24')
    e('s_waitcnt lgkmcnt(0)')
    srd(12, 4, 448*1792*2); srd(16, 6, 3584); srd(28, 8, XB, Y2_OFF); srd(32, 8, 2048*3584, H_OFF)
    BI = 128
    for mt in range(2):
        for g in range(4): e(f'buffer_load_dwordx2 v[{BI+8*mt+2*g}:{BI+8*mt+2*g+1}], v26, s[16:19], 0 offen offset:{mt*64+g*16}')
    def issue(idx):
        s, slot = idx >> 1, (idx % 5)*16384
        if idx & 1 == 0:
            dma_tile(vW, 12, 24, 64*s*3584, slot, 26, 36); dma_tile(vW, 12, 24, 64*s*3584+128, slot+8192, 26, 37)
        else:
            dma_tile(vH, 28, 25, 128*s, slot, 26, 36); dma_tile(vH, 28, 25, 128*s+64*896, slot+8192, 26, 37)
    for i in range(5): issue(i)
    ACC, FR = 64, 32
    def reads(s, sub, buf):
        slotW = ((2*s) % 5)
        a = vA + (2 if slotW >= 3 else 0); off = (slotW - 3 if slotW >= 3 else slotW)*16384 + sub*2048
        b = FR + 16*buf
        for mt in range(2):
            e(f'ds_read_b64_tr_b16 v[{b+4*mt}:{b+4*mt+1}], v{a+mt} offset:{off}')
            e(f'ds_read_b64_tr_b16 v[{b+4*mt+2}:{b+4*mt+3}], v{a+mt} offset:{off+512}')
        for nt in range(2): e(f'ds_read_b128 v[{b+8+4*nt}:{b+11+4*nt}], v{vB+sub} offset:{nt*4096}')
    for s in range(7):
        outst = min(max(4, 2*s+2), 13) - (2*s+1)
        e(f's_waitcnt vmcnt({4*outst})'); e('s_barrier')
        slotH = ((2*s+1) % 5)*16384
        for q in range(4): e(f'v_add_u32 v{vB+q}, {slotH}, v{vBb+q}')
        reads(s, 0, 0)
        if s >= 1:
            for idx in (2*s+3, 2*s+4):
                if idx < 14: issue(idx)
        for sub in range(4):
            if sub < 3: reads(s, sub+1, (sub+1) & 1); e('s_waitcnt lgkmcnt(6)')
            else: e('s_waitcnt lgkmcnt(0)')
            b = FR + 16*(sub & 1)
            for mt in range(2):
                for nt in range(2):
                    c = ACC + 16*(2*mt+nt)
                    e(f'v_mfma_f32_32x32x16_bf16 v[{c}:{c+15}], v[{b+4*mt}:{b+4*mt+3}], v[{b+8+4*nt}:{b+11+4*nt}], ' + ('0' if (s == 0 and sub == 0) else f'v[{c}:{c+15}]'))
    BF = 144
    for i in range(16): lo(BF+2*i, BI+i); hi(BF+2*i+1, BI+i)
    e(f's_mov_b32 s38, {f2u(GC1)}'); e(f'v_mov_b32 v28, {f2u(GC0)}'); e('s_mov_b32 s39, 114688')
    O = 32
    k = 0
    for mt in range(2):
        for nt in range(2):
            c = ACC + 16*(2*mt+nt)
            for gp in range(2):
                o = O + 4*(k % 4); k += 1
                for rr in range(4):
                    r = 8*gp + 2*rr
                    a, b, bb = c+r, c+r+1, BF+16*mt+r
                    t0, t1, t2 = 48+4*(rr & 1), 49+4*(rr & 1), 50+4*(rr & 1)
                    pk(t2, a, b); lo(a, t2); hi(b, t2)
                    e(f'v_add_f32 v{a}, v{a}, v{bb}'); e(f'v_add_f32 v{b}, v{b}, v{bb+1}')
                    pk(t2, a, b); lo(a, t2); hi(b, t2)
                    e(f'v_mul_f32 v{t0}, v{a}, v{a}'); e(f'v_mul_f32 v{t1}, v{b}, v{b}')
                    e(f'v_fma_f32 v{t0}, v{t0}, s38, v28'); e(f'v_fma_f32 v{t1}, v{t1}, s38, v28')
                    e(f'v_mul_f32 v{t0}, v{a}, v{t0}'); e(f'v_mul_f32 v{t1}, v{b}, v{t1}')
                    e(f'v_exp_f32 v{t0}, v{t0}'); e(f'v_exp_f32 v{t1}, v{t1}'); e('s_nop 0')
                    e(f'v_add_f32 v{t0}, 1.0, v{t0}'); e(f'v_add_f32 v{t1}, 1.0, v{t1}')
                    e(f'v_rcp_f32 v{t0}, v{t0}'); e(f'v_rcp_f32 v{t1}, v{t1}'); e('s_nop 0')
                    e(f'v_mul_f32 v{a}, v{a}, v{t0}'); e(f'v_mul_f32 v{b}, v{b}, v{t1}')
                    pk(o+rr, a, b)
                e('s_nop 1')
                e(f'v_permlane32_swap_b32 v{o}, v{o+2}'); e(f'v_permlane32_swap_b32 v{o+1}, v{o+3}')
                e(f'buffer_store_dwordx4 v[{o}:{o+3}], v27, s[32:35], {"s39" if nt else "0"} offen offset:{mt*64+gp*32}')
    e('s_branch L_mid_done')

KL, UL, RED = 0, 33280, 40960
def role_conv():
    e('s_load_dwordx2 s[4:5], s[0:1], 64'); e('s_load_dwordx2 s[6:7], s[0:1], 128')
    e('s_sub_u32 s3, s2, 224'); e('s_lshl_b32 s3, s3, 1')
    e('v_lshrrev_b32 v1, 6, v0'); e('v_and_b32 v2, 63, v0')
    e('v_lshlrev_b32 v3, 4, v2'); e('v_lshl_add_u32 v4, v1, 2, v3'); e('v_add_u32 v5, 4160, v4')
    e('v_lshlrev_b32 v6, 4, v0')
    e('v_mul_u32_u24 v7, 8320, v1'); e('v_add3_u32 v7, v7, v3, 48')
    e('v_lshrrev_b32 v8, 2, v0'); e('v_mul_u32_u24 v8, 80, v8'); e('v_and_b32 v9, 3, v0'); e('v_lshl_add_u32 v8, v9, 4, v8'); e(f'v_add_u32 v8, {UL}, v8')
    e('s_waitcnt lgkmcnt(0)')
    srd(8, 4, 896); srd(12, 6, 448*KGC, KG_OFF); srd(16, 6, XB, UT_OFF); srd(20, 6, XB, AT_OFF)
    PF = 96
    def gload(ch):
        e(f's_add_u32 s24, s3, {ch}'); e(f's_mul_i32 s25, s24, {KGC}'); e('s_lshl_b32 s26, s24, 12'); e('s_lshl_b32 s27, s24, 1')
        for c in range(2):
            for it in range(4): e(f'buffer_load_dwordx4 v[{PF+16*c+4*it}:{PF+16*c+4*it+3}], v{4+c}, s[12:15], s25 offen offset:{1024*it}')
        e(f'buffer_load_dwordx4 v[{PF+32}:{PF+35}], v6, s[16:19], s26 offen')
        e(f'v_mov_b32 v{PF+37}, 0'); e(f'buffer_load_ushort v{PF+36}, v{PF+37}, s[8:11], s27 offen')
    gload(0)
    e('v_mov_b32 v12, 0'); e('v_mov_b32 v13, 0'); e('v_mov_b32 v14, 0'); e('v_mov_b32 v15, 0')
    e('v_lshrrev_b32 v10, 2, v0'); e('v_mul_u32_u24 v10, 4160, v10'); e('v_lshl_add_u32 v10, v9, 4, v10')
    e('v_cmp_gt_u32 vcc, 32, v0'); e('v_cmp_gt_u32 s[28:29], 3, v9'); e('s_and_b64 vcc, vcc, s[28:29]')
    e('s_and_saveexec_b64 s[30:31], vcc'); e('ds_write_b128 v10, v[12:15]'); e('s_mov_b64 exec, s[30:31]')
    e(f'v_add_u32 v10, {UL+5120}, v6'); e('v_cmp_gt_u32 vcc, 155, v0')
    e('s_and_saveexec_b64 s[30:31], vcc'); e('ds_write_b128 v10, v[12:15]'); e('s_mov_b64 exec, s[30:31]')
    e('v_and_b32 v10, 31, v0'); e('v_bfe_u32 v11, v0, 5, 1')
    e('v_and_b32 v12, 7, v10'); e('v_mul_u32_u24 v12, 4160, v12'); e('v_lshrrev_b32 v13, 3, v10'); e('v_add_u32 v13, v13, v11')
    e('v_lshl_add_u32 v12, v13, 4, v12'); e('v_lshl_add_u32 v16, v1, 9, v12')
    e('v_sub_u32 v12, 31, v10'); e('v_mul_u32_u24 v12, 80, v12'); e('v_mul_u32_u24 v13, 640, v1')
    e('v_lshl_add_u32 v13, v11, 4, v13'); e(f'v_add3_u32 v17, v12, v13, s28') if False else None
    e('v_add_u32 v17, v12, v13'); e(f'v_add_u32 v17, {UL}, v17')
    e('v_lshrrev_b32 v13, 1, v1'); e('v_sub_u32 v13, 1, v13'); e('v_mul_u32_u24 v13, 2560, v13'); e('v_add_u32 v13, v13, v12')
    e('v_and_b32 v14, 1, v1'); e('v_lshlrev_b32 v15, 5, v14'); e('v_lshl_add_u32 v15, v11, 3, v15')
    e('v_sub_u32 v13, v13, v15'); e(f'v_add_u32 v18, {UL+40}, v13')
    e(f'v_lshlrev_b32 v19, 13, v1'); e(f'v_add3_u32 v19, v19, v3, s28') if False else None
    e('v_add_u32 v19, v19, v3'); e(f'v_add_u32 v19, {RED}, v19')
    e('v_lshlrev_b32 v20, 11, v1'); e('v_add_u32 v20, v20, v3'); e(f'v_add_u32 v20, {RED}, v20')
    e('v_lshrrev_b32 v13, 1, v1'); e('v_lshlrev_b32 v13, 11, v13'); e('v_lshl_add_u32 v13, v10, 6, v13'); e('v_add_u32 v21, v13, v15')
    A0, A1, FR = 32, 48, 64
    for ch in range(2):
        e('s_waitcnt vmcnt(0)')
        for c in range(2):
            for it in range(4): e(f'ds_write_b128 v7, v[{PF+16*c+4*it}:{PF+16*c+4*it+3}] offset:{4160*c+1024*it}')
        e(f'ds_write_b128 v8, v[{PF+32}:{PF+35}]')
        lo(22, PF+36)
        e('s_mov_b32 s32, s26')
        e('s_waitcnt lgkmcnt(0)'); e('s_barrier')
        if ch == 0: gload(1)
        e('ds_read_b64 v[24:25], v18 offset:16'); e('ds_read_b64 v[26:27], v18')
        def rd(it):
            b = FR + 16*(it & 1); bo = 80*(it >> 1) + 32*(it & 1)
            e(f'ds_read_b128 v[{b}:{b+3}], v16 offset:{32*it}'); e(f'ds_read_b128 v[{b+4}:{b+7}], v17 offset:{bo+2560}')
            e(f'ds_read_b128 v[{b+8}:{b+11}], v17 offset:{bo}'); e(f'ds_read_b128 v[{b+12}:{b+15}], v16 offset:{32*it+2048}')
        rd(0)
        for it in range(16):
            if it < 15: rd(it+1); e('s_waitcnt lgkmcnt(4)')
            else: e('s_waitcnt lgkmcnt(0)')
            b = FR + 16*(it & 1)
            e(f'v_mfma_f32_32x32x16_bf16 v[{A0}:{A0+15}], v[{b}:{b+3}], v[{b+4}:{b+7}], ' + ('0' if it == 0 else f'v[{A0}:{A0+15}]'))
            e(f'v_mfma_f32_32x32x16_bf16 v[{A1}:{A1+15}], v[{b}:{b+3}], v[{b+8}:{b+11}], ' + ('0' if it == 0 else f'v[{A1}:{A1+15}]'))
            e(f'v_mfma_f32_32x32x16_bf16 v[{A1}:{A1+15}], v[{b+12}:{b+15}], v[{b+4}:{b+7}], v[{A1}:{A1+15}]')
        e('s_nop 15')
        for j in range(8): e(f'ds_write_b128 v19, v[{A0+4*j}:{A0+4*j+3}] offset:{1024*j}')
        e('s_waitcnt lgkmcnt(0)'); e('s_barrier')
        for jj in range(2):
            for w in range(4): e(f'ds_read_b128 v[{FR+16*jj+4*w}:{FR+16*jj+4*w+3}], v20 offset:{8192*w+1024*jj}')
        for jj in range(2):
            e(f's_waitcnt lgkmcnt({4*(1-jj)})')
            b = FR + 16*jj; u = 24 + 2*jj
            for i in range(4):
                e(f'v_add_f32 v{b+i}, v{b+i}, v{b+4+i}'); e(f'v_add_f32 v{b+8+i}, v{b+8+i}, v{b+12+i}')
            for i in range(4): e(f'v_add_f32 v{b+i}, v{b+i}, v{b+8+i}')
            pk(b+4, b, b+1); pk(b+5, b+2, b+3)
            lo(b, b+4); hi(b+1, b+4); lo(b+2, b+5); hi(b+3, b+5)
            hi(b+8, u+1); lo(b+9, u+1); hi(b+10, u); lo(b+11, u)
            for i in range(4): e(f'v_mul_f32 v{b+8+i}, v{b+8+i}, v22')
            pk(b+4, b+8, b+9); pk(b+5, b+10, b+11)
            lo(b+8, b+4); hi(b+9, b+4); lo(b+10, b+5); hi(b+11, b+5)
            for i in range(4): e(f'v_add_f32 v{b+i}, v{b+i}, v{b+8+i}')
            pk(b+4, b, b+1); pk(b+5, b+2, b+3)
            e(f'buffer_store_dwordx2 v[{b+4}:{b+5}], v21, s[20:23], s32 offen offset:{16*jj}')

def kernel_mid():
    kstart('mid_kernel')
    e('s_cmp_ge_u32 s2, 448'); e('s_cbranch_scc1 L_mid_done')
    e('s_cmp_ge_u32 s2, 224'); e('s_cbranch_scc1 L_conv')
    role_gemm1()
    lab('L_conv')
    role_conv()
    lab('L_mid_done')
    e('s_endpgm')

def kernel_fin():
    kstart('fin_kernel')
    e('s_cmp_ge_u32 s2, 224'); e('s_cbranch_scc1 L_fin_done')
    e('s_load_dwordx2 s[4:5], s[0:1], 0'); e('s_load_dwordx4 s[8:11], s[0:1], 96'); e('s_load_dwordx2 s[6:7], s[0:1], 112'); e('s_load_dwordx2 s[44:45], s[0:1], 128')
    e('s_and_b32 s20, s2, 7'); e('s_lshr_b32 s21, s2, 3'); e('s_mul_i32 s22, s21, 37'); e('s_lshr_b32 s22, s22, 8')
    e('s_mul_i32 s23, s22, 7'); e('s_sub_u32 s21, s21, s23'); e('s_lshl_b32 s20, s20, 2'); e('s_add_u32 s20, s20, s22')
    e('s_lshl_b32 s24, s21, 7')
    e(f's_mul_i32 s25, s20, {64*3584}')
    e('v_lshrrev_b32 v1, 6, v0'); e('s_nop 0'); e('v_readfirstlane_b32 s26, v1'); e('s_lshl_b32 s26, s26, 11')
    vW, vH = 2, 4
    dma_voffs(896, 3584, vW, vH, 10)
    e('v_lshrrev_b32 v20, 7, v0'); e('v_bfe_u32 v21, v0, 6, 1'); e('v_lshlrev_b32 v22, 5, v21')
    vAb, vBb, vA, vB = 6, 16, 7, 24
    frag_addrs(vAb, 1, vBb, 20, 22, 10)
    e('v_bfe_u32 v10, v0, 5, 1'); e('v_and_b32 v12, 31, v0'); e('v_add_u32 v12, v12, v22'); e('s_lshl_b32 s27, s20, 6'); e('v_add_u32 v12, s27, v12')
    e('v_lshlrev_b32 v11, 6, v20'); e('v_lshl_add_u32 v28, v10, 3, v11'); e('v_add_u32 v28, s24, v28')
    e('v_lshlrev_b32 v29, 11, v28'); e('v_lshl_add_u32 v29, v12, 1, v29')
    e('v_mul_u32_u24 v13, 896, v12'); e('v_add_u32 v30, v13, v28')
    e('v_lshl_add_u32 v31, v10, 3, v30')
    e('s_waitcnt lgkmcnt(0)')
    srd(12, 8, 1792*896); srd(16, 10, 896); srd(28, 44, 2048*3584, H_OFF); srd(32, 44, XB, AT_OFF); srd(36, 4, XB); srd(40, 6, XB)
    def issue(s):
        slot = (s % 4)*32768
        dma_tile(vW, 12, 24, 128*s*896, slot, 26, 46); dma_tile(vH, 28, 25, 256*s, slot+16384, 26, 47)
        dma_tile(vW, 12, 24, (128*s+64)*896, slot+8192, 26, 46); dma_tile(vH, 28, 25, 256*s+128, slot+24576, 26, 47)
    issue(0)
    AT, XR, B2 = 112, 128, 136
    for g in range(4):
        for j in range(4):
            e(f's_mov_b32 s48, {(8*g+j)*4096}'); e(f'buffer_load_ushort v{AT+4*g+j}, v29, s[32:35], s48 offen')
    for g in range(4): e(f'buffer_load_dwordx2 v[{XR+2*g}:{XR+2*g+1}], v30, s[36:39], 0 offen offset:{16*g}')
    for g in range(4): e(f'buffer_load_dwordx2 v[{B2+2*g}:{B2+2*g+1}], v28, s[16:19], 0 offen offset:{16*g}')
    issue(1); issue(2)
    ACC, FR = 32, 48
    def reads(p, sub):
        b = FR + 32*p + 8*sub
        e(f'ds_read_b64_tr_b16 v[{b}:{b+1}], v{vA} offset:{p*8192+sub*2048}'); e(f'ds_read_b64_tr_b16 v[{b+2}:{b+3}], v{vA} offset:{p*8192+sub*2048+512}')
        e(f'ds_read_b128 v[{b+4}:{b+7}], v{vB+sub} offset:{16384+p*8192}')
    def mm(p, sub, first):
        b = FR + 32*p + 8*sub
        e(f'v_mfma_f32_32x32x16_bf16 v[{ACC}:{ACC+15}], v[{b}:{b+3}], v[{b+4}:{b+7}], ' + ('0' if first else f'v[{ACC}:{ACC+15}]'))
    for s in range(14):
        outst = min(s+2, 13) - s
        extra = 24 if s == 0 else 0
        e(f's_waitcnt vmcnt({8*outst+extra})'); e('s_barrier')
        slot = (s % 4)*32768
        e(f'v_add_u32 v{vA}, {slot}, v{vAb}')
        for q in range(4): e(f'v_add_u32 v{vB+q}, {slot}, v{vBb+q}')
        for sub in range(4): reads(0, sub)
        if s+3 < 14: issue(s+3)
        for sub in range(4):
            reads(1, sub); e('s_waitcnt lgkmcnt(12)'); mm(0, sub, s == 0 and sub == 0)
        for sub in range(4):
            e(f's_waitcnt lgkmcnt({9-3*sub})'); mm(1, sub, False)
    T = 48
    for g in range(4):
        lo(T+4*g, XR+2*g); hi(T+4*g+1, XR+2*g); lo(T+4*g+2, XR+2*g+1); hi(T+4*g+3, XR+2*g+1)
        for j in range(4):
            e(f'v_lshlrev_b32 v{AT+4*g+j}, 16, v{AT+4*g+j}'); e(f'v_add_f32 v{T+4*g+j}, v{T+4*g+j}, v{AT+4*g+j}')
        for h in range(2):
            pk(XR+2*g+h, T+4*g+2*h, T+4*g+2*h+1); lo(T+4*g+2*h, XR+2*g+h); hi(T+4*g+2*h+1, XR+2*g+h)
    O = 80
    for i in range(8):
        a, b = ACC+2*i, ACC+2*i+1
        pk(64, a, b); lo(a, 64); hi(b, 64); lo(65, B2+i); hi(66, B2+i)
        e(f'v_add_f32 v{a}, v{a}, v65'); e(f'v_add_f32 v{b}, v{b}, v66')
        pk(64, a, b); lo(a, 64); hi(b, 64)
        e(f'v_add_f32 v{a}, v{a}, v{T+2*i}'); e(f'v_add_f32 v{b}, v{b}, v{T+2*i+1}')
        pk(O+i, a, b)
    e('s_nop 1')
    for gp in range(2):
        o = O + 4*gp
        e(f'v_permlane32_swap_b32 v{o}, v{o+2}'); e(f'v_permlane32_swap_b32 v{o+1}, v{o+3}')
        e(f'buffer_store_dwordx4 v[{o}:{o+3}], v31, s[40:43], 0 offen offset:{32*gp}')
    lab('L_fin_done')
    e('s_endpgm')

def kd(name, vg):
    L.append('.p2align 6'); L.append(f'.amdhsa_kernel {name}')
    for s in (f'.amdhsa_next_free_vgpr {vg}', '.amdhsa_next_free_sgpr 64', f'.amdhsa_accum_offset {(vg+3)//4*4}', '.amdhsa_group_segment_fixed_size 0',
              '.amdhsa_kernarg_size 136', '.amdhsa_user_sgpr_count 2', '.amdhsa_user_sgpr_kernarg_segment_ptr 1', '.amdhsa_system_sgpr_workgroup_id_x 1'):
        L.append('  ' + s)
    L.append('.end_amdhsa_kernel')

if __name__ == '__main__':
    ref = open('parallel_sum__ssm_conv_s4__mixer_channel_mlp__prompt.s.ref').read().split('\n')
    hdr = [l for l in ref if l.startswith(';') and '@launch' not in l and 'Override' not in l and 'grid=ceil' not in l]
    L.extend(hdr)
    L.append('; @launch kernel=prep_kernel grid=(576,1,1) block=(256,1,1) lds=54272')
    L.append('; @launch kernel=mid_kernel grid=(448,1,1) block=(256,1,1) lds=81920')
    L.append('; @launch kernel=fin_kernel grid=(224,1,1) block=(256,1,1) lds=131072')
    L.append('.amdgcn_target "amdgcn-amd-amdhsa--gfx950"'); L.append('.text')
    kernel_prep(); kernel_mid(); kernel_fin()
    L.append('.section .rodata,"a"')
    kd('prep_kernel', 120); kd('mid_kernel', 176); kd('fin_kernel', 144)
    open('parallel_sum__ssm_conv_s4__mixer_channel_mlp__prompt.s', 'w').write('\n'.join(L) + '\n')
```

```python
import struct
L = []
def e(s): L.append('    ' + s)
def lab(s): L.append(s + ':')
def f2u(x): return '0x%08x' % struct.unpack('<I', struct.pack('<f', x))[0]
LOG2E = 1.4426950408889634
Y2_OFF, UT_OFF, KG_OFF, H_OFF, AT_OFF = 0, 0x200000, 0x400000, 0x800000, 0x1000000
XB = 2048*448*2
KGC = 8320
def srd(d, b, size, off=0):
    if off:
        e(f's_add_u32 s{d}, s{b}, {hex(off)}'); e(f's_addc_u32 s{d+1}, s{b+1}, 0')
    else:
        e(f's_mov_b32 s{d}, s{b}'); e(f's_mov_b32 s{d+1}, s{b+1}')
    e(f's_mov_b32 s{d+2}, {hex(size)}'); e(f's_mov_b32 s{d+3}, 0x00020000')
def lo(d, p): e(f'v_lshlrev_b32 v{d}, 16, v{p}')
def hi(d, p): e(f'v_and_b32 v{d}, 0xffff0000, v{p}')
def pk(d, a, b): e(f'v_cvt_pk_bf16_f32 v{d}, {a if isinstance(a,str) else "v%d"%a}, {b if isinstance(b,str) else "v%d"%b}')
import os
DBG = int(os.environ.get('DBG', '0'))
nst = [0]
def stamp(real=False):
    if not DBG: return
    k = nst[0]; nst[0] += 1
    e(('s_memrealtime' if real else 's_memtime') + ' s[60:61]'); e('s_waitcnt lgkmcnt(0)'); e(f's_mov_b32 s{64+k}, s60')
def stamp_begin():
    nst[0] = 0; stamp(True); stamp()
def stamp_end(wgs):
    if not DBG: return
    stamp(); stamp(True)
    n = nst[0]; assert n <= 16
    lbl = 'L_dbg%d' % len(L)
    e('s_mov_b32 s62, -1')
    for slot, w in wgs:
        e(f's_cmp_eq_u32 s2, {w}'); e(f's_cselect_b32 s62, {slot*64}, s62')
    e('s_cmp_eq_u32 s62, -1'); e(f's_cbranch_scc1 {lbl}')
    e('s_load_dwordx2 s[60:61], s[0:1], 120'); e('s_waitcnt lgkmcnt(0)')
    srd(56, 60, 256)
    e('s_mov_b64 exec, 1'); e('v_mov_b32 v1, 0')
    e('v_readfirstlane_b32 s63, v0'); e('s_cmp_lg_u32 s63, 0'); e(f's_cbranch_scc1 {lbl}')
    for k in range(n):
        e(f'v_mov_b32 v2, s{64+k}'); e(f'buffer_store_dword v2, v1, s[56:59], s62 offen offset:{4*k}'); e('s_nop 1')
    lab(lbl)
def kstart(name):
    L.append(f'.globl {name}'); L.append('.p2align 8'); L.append(f'.type {name},@function'); lab(name)

def allreduce16(v):
    for r in (8, 4, 2, 1):
        e('s_nop 1')
        e(f'v_add_f32_dpp v{v}, v{v}, v{v} row_ror:{r} row_mask:0xf bank_mask:0xf')
def ln(E, P, T):
    s0, s1, s2, s3, m, r, t0, t1 = [T+i for i in range(8)]
    acc = [s0, s1, s2, s3]
    for i in range(4): e(f'v_add_f32 v{acc[i]}, v{E+i}, v{E+4+i}')
    for i in range(8, 28): e(f'v_add_f32 v{acc[i%4]}, v{acc[i%4]}, v{E+i}')
    e(f'v_add_f32 v{s0}, v{s0}, v{s1}'); e(f'v_add_f32 v{s2}, v{s2}, v{s3}'); e(f'v_add_f32 v{s0}, v{s0}, v{s2}')
    allreduce16(s0)
    e(f'v_mul_f32 v{m}, {f2u(1/448)}, v{s0}')
    for i in range(28):
        t = t0 if i % 2 == 0 else t1
        e(f'v_sub_f32 v{t}, v{E+i}, v{m}')
        if i < 4: e(f'v_mul_f32 v{acc[i]}, v{t}, v{t}')
        else: e(f'v_fmac_f32 v{acc[i%4]}, v{t}, v{t}')
    e(f'v_add_f32 v{s0}, v{s0}, v{s1}'); e(f'v_add_f32 v{s2}, v{s2}, v{s3}'); e(f'v_add_f32 v{s0}, v{s0}, v{s2}')
    allreduce16(s0)
    e(f'v_mul_f32 v{s0}, {f2u(1/448)}, v{s0}')
    pk(s1, m, s0); lo(m, s1); hi(s0, s1)
    e(f'v_add_f32 v{s0}, {f2u(1e-5)}, v{s0}')
    pk(s1, s0, s0); lo(s0, s1)
    e(f'v_sqrt_f32 v{s0}, v{s0}'); e('s_nop 0')
    pk(s1, s0, s0); lo(s0, s1)
    e(f'v_rcp_f32 v{r}, v{s0}'); e('s_nop 0')
    for i in range(14):
        a, b = E+2*i, E+2*i+1
        e(f'v_sub_f32 v{a}, v{a}, v{m}'); e(f'v_sub_f32 v{b}, v{b}, v{m}')
        pk(P+i, a, b); lo(a, P+i); hi(b, P+i)
        e(f'v_mul_f32 v{a}, v{a}, v{r}'); e(f'v_mul_f32 v{b}, v{b}, v{r}')
        pk(P+i, a, b); lo(a, P+i); hi(b, P+i)

def role_ln():
    stamp_begin()
    e('s_load_dwordx2 s[4:5], s[0:1], 0'); e('s_load_dwordx2 s[6:7], s[0:1], 128')
    e('v_lshrrev_b32 v1, 4, v0'); e('v_and_b32 v2, 15, v0')
    e('s_lshl_b32 s3, s2, 4')
    e('v_add_u32 v3, s3, v1'); e('v_mul_u32_u24 v3, 896, v3'); e('v_lshl_add_u32 v3, v2, 3, v3')
    e('v_sub_u32 v4, 15, v1'); e('v_mul_u32_u24 v4, 960, v4'); e('v_lshl_add_u32 v4, v2, 3, v4')
    e('s_waitcnt lgkmcnt(0)')
    srd(8, 4, XB); srd(12, 6, XB, Y2_OFF); srd(16, 6, XB, UT_OFF)
    R, E, T = 10, 24, 52
    for c in range(7): e(f'buffer_load_dwordx2 v[{R+2*c}:{R+2*c+1}], v3, s[8:11], 0 offen offset:{128*c}')
    e('v_and_b32 v5, 15, v0'); e('v_lshrrev_b32 v6, 2, v5'); e('v_mul_u32_u24 v6, 960, v6')
    e('v_and_b32 v7, 3, v0'); e('v_lshl_add_u32 v6, v7, 3, v6'); e('v_lshl_add_u32 v6, v1, 5, v6')
    e('s_lshl_b32 s20, s3, 1'); e('s_sub_u32 s20, 4064, s20')
    e('v_lshlrev_b32 v7, 12, v0'); e('v_add_u32 v7, s20, v7')
    for c in range(7):
        e(f's_waitcnt vmcnt({6-c})')
        lo(E+4*c, R+2*c); hi(E+4*c+1, R+2*c); lo(E+4*c+2, R+2*c+1); hi(E+4*c+3, R+2*c+1)
    stamp()
    ln(E, R, T)
    stamp()
    for c in range(7): e(f'ds_write_b64 v4, v[{R+2*c}:{R+2*c+1}] offset:{128*c}')
    P2 = 60
    ln(E, P2, T)
    for c in range(7): e(f'buffer_store_dwordx2 v[{P2+2*c}:{P2+2*c+1}], v3, s[12:15], 0 offen offset:{128*c}')
    stamp()
    e('s_waitcnt lgkmcnt(0)'); e('s_barrier')
    for k in range(4): e(f'ds_read_b64_tr_b16 v[{24+2*k}:{25+2*k}], v6 offset:{3840*k}')
    e('v_readfirstlane_b32 s21, v0')
    e('s_waitcnt lgkmcnt(0)')
    e('buffer_store_dwordx4 v[24:27], v7, s[16:19], 0 offen'); e('buffer_store_dwordx4 v[28:31], v7, s[16:19], 0 offen offset:16')
    e('s_cmp_ge_u32 s21, 192'); e('s_cbranch_scc1 L_prep_done')
    for k in range(4): e(f'ds_read_b64_tr_b16 v[{32+2*k}:{33+2*k}], v6 offset:{3840*k+512}')
    e('s_mov_b32 s22, 0x100000')
    e('s_waitcnt lgkmcnt(0)')
    e('buffer_store_dwordx4 v[32:35], v7, s[16:19], s22 offen'); e('buffer_store_dwordx4 v[36:39], v7, s[16:19], s22 offen offset:16')
    stamp_end([(0,0),(1,127)])
    e('s_branch L_prep_done')

def cmul(dr, di, ar, ai, br, bi, t0, t1):
    e(f'v_mul_f32 v{t0}, v{ai}, v{bi}'); e(f'v_mul_f32 v{t1}, v{ai}, v{br}')
    e(f'v_fma_f32 v{dr}, v{ar}, v{br}, -v{t0}'); e(f'v_fma_f32 v{di}, v{ar}, v{bi}, v{t1}')
def cexp(dr, di, a2, ph, lam, t0, t1, t2):
    e(f'v_mul_f32 v{t0}, {f2u(float(lam))}, v{a2}'); e(f'v_mul_f32 v{t1}, {f2u(float(lam))}, v{ph}')
    e(f'v_exp_f32 v{t0}, v{t0}'); e(f'v_fract_f32 v{t1}, v{t1}')
    e(f'v_cos_f32 v{t2}, v{t1}'); e(f'v_sin_f32 v{t1}, v{t1}'); e('s_nop 0')
    e(f'v_mul_f32 v{dr}, v{t0}, v{t2}'); e(f'v_mul_f32 v{di}, v{t0}, v{t1}')
def role_kgen():
    stamp_begin()
    e('s_load_dwordx8 s[4:11], s[0:1], 8'); e('s_load_dwordx4 s[12:15], s[0:1], 40')
    e('s_load_dwordx2 s[16:17], s[0:1], 56'); e('s_load_dwordx2 s[18:19], s[0:1], 128')
    e('s_sub_u32 s3, s2, 128')
    e('s_lshl_b32 s20, s3, 9'); e('v_lshl_add_u32 v1, v0, 1, s20')
    e('s_lshl_b32 s21, s3, 1'); e('v_mov_b32 v2, s21')
    e('s_waitcnt lgkmcnt(0)')
    for i in range(6):
        srd(24, 4+2*i, 448*256*2)
        e(f'buffer_load_ushort v{10+i}, v1, s[24:27], 0 offen')
        e('s_nop 0')
    srd(24, 16, 896); e('buffer_load_ushort v16, v2, s[24:27], 0 offen')
    srd(28, 18, 448*KGC, KG_OFF)
    e('v_lshrrev_b32 v3, 2, v0'); e('v_and_b32 v4, 3, v0'); e('v_lshlrev_b32 v4, 2, v4')
    for x in range(8):
        e(f'v_xor_b32 v5, {2*x}, v3'); e(f'v_lshl_add_u32 v{60+x}, v5, 4, v4')
    e('v_and_b32 v5, 15, v0'); e('v_bfe_u32 v6, v0, 4, 2')
    e('v_lshlrev_b32 v7, 1, v5'); e('v_and_b32 v7, 15, v7')
    e('v_lshrrev_b32 v8, 7, v0'); e('v_bfe_u32 v9, v0, 6, 1')
    e('v_lshl_add_u32 v8, v8, 4, v5'); e('v_lshlrev_b32 v8, 10, v8')
    e('v_lshl_add_u32 v17, v9, 4, v5'); e('v_add_u32 v17, 21, v17'); e('v_lshlrev_b32 v17, 10, v17')
    for s in range(4):
        e(f'v_or_b32 v18, {4*s}, v6'); e('v_xor_b32 v18, v18, v7')
        e(f'v_lshl_add_u32 v{70+s}, v18, 4, v8'); e(f'v_lshl_add_u32 v{74+s}, v18, 4, v17')
    e('v_lshl_add_u32 v78, v9, 4, v5'); e('v_lshlrev_b32 v78, 4, v78')
    e('v_readfirstlane_b32 s22, v0')
    e('v_cmp_eq_u32 s[32:33], 1, v6'); e('v_cmp_eq_u32 s[34:35], 2, v6'); e('v_cmp_eq_u32 s[36:37], 3, v6')
    DUM = 2304
    tab0 = [[r, 4+r, 256+2*r, 512+4*(r&1)+256*(r>>1)] for r in range(4)]
    tab1 = [[1024+256*r, 2048 if r == 0 else DUM, DUM, DUM] for r in range(4)]
    e('s_cmp_ge_u32 s22, 128')
    for r in range(4):
        for g in range(4): e(f's_cselect_b32 s{40+g}, {2*tab1[r][g]}, {2*tab0[r][g]}') if False else None
        for g in range(4):
            e(f's_mov_b32 s{44}, {2*tab0[r][g]}'); e(f's_cselect_b32 s{40+g}, {2*tab1[r][g]}, s44')
        e(f'v_mov_b32 v{80+r}, s40'); e('v_mov_b32 v18, s41'); e(f'v_cndmask_b32 v{80+r}, v{80+r}, v18, s[32:33]')
        e('v_mov_b32 v18, s42'); e(f'v_cndmask_b32 v{80+r}, v{80+r}, v18, s[34:35]')
        e('v_mov_b32 v18, s43'); e(f'v_cndmask_b32 v{80+r}, v{80+r}, v18, s[36:37]')
        e(f'v_add_u32 v{80+r}, v{80+r}, v78')
    e('s_waitcnt vmcnt(0)')
    stamp()
    for i in range(7): e(f'v_lshlrev_b32 v{10+i}, 16, v{10+i}')
    are, aim, bre, bim, cre, cim, ldt = range(10, 17)
    e(f'v_mul_f32 v{ldt}, {f2u(LOG2E)}, v{ldt}'); e(f'v_exp_f32 v{ldt}, v{ldt}'); e('s_nop 0')
    pk(18, ldt, ldt); lo(ldt, 18)
    for r in (are, aim, bre, bim): e(f'v_mul_f32 v{r}, v{ldt}, v{r}')
    a2, ph = 20, 21
    e(f'v_mul_f32 v{a2}, {f2u(LOG2E)}, v{are}'); e(f'v_mul_f32 v{ph}, 0.15915494, v{aim}')
    t0, t1, t2 = 22, 23, 24
    gr, gi = 26, 27
    cmul(gr, gi, cre, cim, bre, bim, t0, t1)
    E1, W, E256, E1024, E512, E768 = 28, 30, 32, 34, 36, 38
    cexp(W, W+1, a2, ph, 8, t0, t1, t2); cexp(E1, E1+1, a2, ph, 1, t0, t1, t2)
    cexp(E256, E256+1, a2, ph, 256, t0, t1, t2); cexp(E1024, E1024+1, a2, ph, 1024, t0, t1, t2)
    pkr = [25, 19]; cnt = [0]
    def put(row, m, r, i, neg):
        p = pkr[cnt[0] % 2]; cnt[0] += 1
        pk(p, r, ('-v%d' % i) if neg else i)
        e(f'ds_write_b32 v{60+(m%8)}, v{p} offset:{row*1024}')
    e('v_mov_b32 v40, 1.0'); e('v_mov_b32 v41, 0')
    put(21, 0, 40, 41, False); put(22, 1, W, W+1, False)
    cur = W
    bufs = [42, 44]
    for j in range(2, 32):
        n = bufs[j % 2]
        cmul(n, n+1, cur, cur+1, W, W+1, t0, t1); put(21+j, j, n, n+1, False); cur = n
    keep = {0: gr, 2: 46, 4: 48, 6: 50}
    put(0, 0, gr, gi, True); cur = gr
    for r in range(1, 8):
        n = keep[r] if r in keep else bufs[r % 2]
        cmul(n, n+1, cur, cur+1, E1, E1+1, t0, t1); put(r, r, n, n+1, True); cur = n
    cmul(E512, E512+1, E256, E256+1, E256, E256+1, t0, t1); cmul(E768, E768+1, E512, E512+1, E256, E256+1, t0, t1)
    lst = [(8, 0, E256), (9, 2, E256), (10, 4, E256), (11, 6, E256), (12, 0, E512), (13, 4, E512), (14, 0, E768), (15, 4, E768)]
    for k, (row, x, E) in enumerate(lst):
        n = bufs[k % 2]; cmul(n, n+1, keep[x], keep[x]+1, E, E+1, t0, t1); put(row, row, n, n+1, True)
    X1024 = 52
    cmul(X1024, X1024+1, gr, gi, E1024, E1024+1, t0, t1); put(16, 0, X1024, X1024+1, True)
    for k, (row, E) in enumerate([(17, E256), (18, E512), (19, E768), (20, E1024)]):
        n = bufs[k % 2]; cmul(n, n+1, X1024, X1024+1, E, E+1, t0, t1); put(row, row-16, n, n+1, True)
    stamp()
    e('s_waitcnt lgkmcnt(0)'); e('s_barrier')
    stamp()
    FB = 84
    def rd(s):
        b = FB + 8*(s % 4)
        e(f'ds_read_b128 v[{b}:{b+3}], v{70+s%4} offset:{(s>>2)*256}'); e(f'ds_read_b128 v[{b+4}:{b+7}], v{74+s%4} offset:{(s>>2)*256}')
    for s in range(3): rd(s)
    for s in range(16):
        if s+3 < 16: rd(s+3)
        e(f's_waitcnt lgkmcnt({2*min(3, 15-s)})')
        b = FB + 8*(s % 4)
        e(f'v_mfma_f32_16x16x32_bf16 v[{12}:{15}], v[{b}:{b+3}], v[{b+4}:{b+7}], ' + ('0' if s == 0 else 'v[12:15]'))
    def idx(base_v, A):
        for k in range(9):
            e(f'v_add_u32 v{A+k}, {k-7}, v{base_v}'); e(f'v_max_i32 v{A+k}, 0, v{A+k}'); e(f'v_cvt_f32_u32 v{A+k}, v{A+k}')
        for k in range(0, 9, 2):
            b = A+k+1 if k+1 < 9 else A+k
            pk(18, A+k, b); lo(A+k, 18)
            if k+1 < 9: hi(A+k+1, 18)
        for k in range(9):
            e(f'v_cvt_u32_f32 v{A+k}, v{A+k}'); e(f'v_lshlrev_b32 v{A+k}, 1, v{A+k}')
    e('v_lshlrev_b32 v3, 3, v0')
    idx(3, 26)
    e('s_barrier')
    pk(16, 12, 13); pk(17, 14, 15)
    e('ds_write_b16 v80, v16'); e('ds_write_b16_d16_hi v81, v16'); e('ds_write_b16 v82, v17'); e('ds_write_b16_d16_hi v83, v17')
    e('s_waitcnt lgkmcnt(0)'); e('s_barrier')
    stamp()
    e(f's_mul_i32 s20, s3, {KGC}')
    def expand(A, V, qv, first):
        for k in range(9): e(f'ds_read_u16 v{V+k}, v{A+k}')
        e('s_waitcnt lgkmcnt(0)')
        if first:
            e('v_cmp_eq_u32 vcc, 0, v0'); e('s_nop 1')
            for k in range(7): e(f'v_cndmask_b32 v{V+k}, v{V+k}, 0, vcc')
        for k in range(4): e(f'v_lshl_or_b32 v{V+12+k}, v{V+2*k+1}, 16, v{V+2*k}')
        for k in range(4): e(f'v_lshl_or_b32 v{V+16+k}, v{V+2*k+2}, 16, v{V+2*k+1}')
        e(f'buffer_store_dwordx4 v[{V+12}:{V+15}], v{qv}, s[28:31], s20 offen')
        e(f'buffer_store_dwordx4 v[{V+16}:{V+19}], v{qv}, s[28:31], s21 offen')
    e('s_add_u32 s21, s20, 4160')
    e('v_lshlrev_b32 v4, 4, v0')
    expand(26, 36, 4, True)
    e('s_cmp_ge_u32 s22, 64'); e('s_cbranch_scc1 L_prep_done')
    e('v_mov_b32 v3, 2048'); e('v_mov_b32 v4, 4096')
    idx(3, 26)
    e('v_cmp_eq_u32 vcc, 0, v0'); e('s_and_saveexec_b64 s[38:39], vcc')
    expand(26, 60, 4, False)
    stamp_end([(2,128),(3,575)])

def kernel_prep():
    kstart('prep_kernel')
    e('s_cmp_ge_u32 s2, 576'); e('s_cbranch_scc1 L_prep_done')
    e('s_cmp_ge_u32 s2, 128'); e('s_cbranch_scc1 L_kgen')
    role_ln()
    lab('L_kgen')
    role_kgen()
    lab('L_prep_done')
    e('s_endpgm')

ST = ' sc1' if os.environ.get('NOSC1') is None else ''
def dma_voffs(RSW, RSH, vW, vH, t, gW, gH):
    rl, ch, w16, a, b = t, t+1, t+2, t+3, t+4
    e(f'v_bfe_u32 v{rl}, v0, 3, 3'); e(f'v_and_b32 v{ch}, 7, v0'); e(f'v_bfe_u32 v{w16}, v0, 6, 2'); e(f'v_lshl_add_u32 v{w16}, v{w16}, 4, v{rl}')
    e(f'v_bfe_u32 v{a}, v{rl}, 1, 1'); e(f'v_lshlrev_b32 v{a}, 2, v{a}'); e(f'v_xor_b32 v{a}, v{a}, v{ch}')
    e(f'v_mul_u32_u24 v{b}, {RSW}, v{w16}'); e(f'v_lshl_add_u32 v{vW}, v{a}, 4, v{b}')
    e(f'v_lshrrev_b32 v{a}, 1, v{rl}'); e(f'v_xor_b32 v{a}, v{a}, v{ch}')
    e(f'v_mul_u32_u24 v{b}, {RSH}, v{w16}'); e(f'v_lshl_add_u32 v{vH}, v{a}, 4, v{b}')
    e(f'v_xor_b32 v{a}, 4, v{a}'); e(f'v_lshl_add_u32 v{vH+1}, v{a}, 4, v{b}'); e(f'v_add_u32 v{vH+1}, {8*RSH-1024}, v{vH+1}')
    e(f'v_lshrrev_b32 v{a}, 8, v0'); e(f'v_mul_u32_u24 v{b}, {gW}, v{a}'); e(f'v_add_u32 v{vW}, v{vW}, v{b}'); e(f'v_add_u32 v{vW+1}, {8*RSW-1024}, v{vW}')
    e(f'v_mul_u32_u24 v{b}, {gH}, v{a}'); e(f'v_add_u32 v{vH}, v{vH}, v{b}'); e(f'v_add_u32 v{vH+1}, v{vH+1}, v{b}')
def wave_sW(s):
    e('v_lshrrev_b32 v1, 6, v0'); e('s_nop 0'); e(f'v_readfirstlane_b32 s{s}, v1'); e(f's_lshl_b32 s{s}, s{s}, 11')
def dma_tile(v, S, sbase, moff, ldsoff, sW, st):
    e(f's_add_u32 m0, s{sW}, {ldsoff}'); e(f's_add_u32 s{st}, s{sbase}, {moff}')
    e(f'buffer_load_dwordx4 v{v}, s[{S}:{S+3}], s{st} offen lds')
    e(f'buffer_load_dwordx4 v{v+1}, s[{S}:{S+3}], s{st} offen offset:1024 lds')
def frag_addrs(vA, vB, mt0, nrow0, t):
    r, c, g, a, b = t, t+1, t+2, t+3, t+4
    e(f'v_bfe_u32 v{r}, v0, 2, 2'); e(f'v_and_b32 v{c}, 3, v0'); e(f'v_bfe_u32 v{g}, v0, 4, 1')
    e(f'v_lshrrev_b32 v{a}, 1, v{c}'); e(f'v_lshl_add_u32 v{a}, v{g}, 1, v{a}')
    e(f'v_bfe_u32 v{g}, v{r}, 1, 1'); e(f'v_lshl_or_b32 v{a}, v{g}, 2, v{a}')
    e(f'v_bfe_u32 v{g}, v0, 5, 1'); e(f'v_lshl_add_u32 v{b}, v{g}, 3, v{r}'); e(f'v_lshlrev_b32 v{b}, 7, v{b}')
    e(f'v_and_b32 v{c}, 1, v{c}'); e(f'v_lshl_add_u32 v{b}, v{c}, 3, v{b}')
    if mt0 is None:
        e(f'v_lshl_add_u32 v{vA}, v{a}, 4, v{b}'); e(f'v_xor_b32 v{vA+1}, 64, v{vA}')
    else:
        e(f'v_lshlrev_b32 v{c}, 2, v{mt0}'); e(f'v_xor_b32 v{a}, v{a}, v{c}'); e(f'v_lshl_add_u32 v{vA}, v{a}, 4, v{b}')
    e(f'v_and_b32 v{r}, 31, v0'); e(f'v_bfe_u32 v{a}, v{r}, 1, 3'); e(f'v_xor_b32 v{a}, v{a}, v{g}')
    e(f'v_add_u32 v{r}, v{r}, v{nrow0}'); e(f'v_lshlrev_b32 v{r}, 7, v{r}')
    for s in range(4):
        e(f'v_xor_b32 v{c}, {2*s}, v{a}'); e(f'v_lshl_add_u32 v{vB+s}, v{c}, 4, v{r}')

GC0 = -2*LOG2E*0.7978845608028654
GC1 = GC0*0.044715
def role_gemm1():
    stamp_begin()
    e('s_load_dwordx4 s[4:7], s[0:1], 80'); e('s_load_dwordx2 s[8:9], s[0:1], 128')
    e('s_and_b32 s20, s2, 7'); e('s_lshr_b32 s21, s2, 3')
    e('s_cmp_ge_u32 s21, 14'); e('s_cselect_b32 s22, 1, 0'); e('s_cselect_b32 s23, 14, 0')
    e('s_sub_u32 s21, s21, s23'); e('s_lshl_b32 s20, s20, 1'); e('s_add_u32 s20, s20, s22')
    e('s_lshl_b32 s24, s21, 8'); e(f's_mul_i32 s25, s20, {128*896}')
    wave_sW(26)
    vW, vH = 2, 4
    dma_voffs(3584, 896, vW, vH, 10, 128, 64*896)
    e('v_lshrrev_b32 v20, 8, v0'); e('v_bfe_u32 v21, v0, 6, 2'); e('v_lshlrev_b32 v21, 5, v21')
    vA, vBb, vB = 6, 16, 22
    frag_addrs(vA, vBb, None, 21, 10)
    e('v_lshlrev_b32 v10, 13, v20'); e(f'v_add_u32 v{vA}, v{vA}, v10'); e(f'v_add_u32 v{vA+1}, v{vA+1}, v10')
    e(f'v_add_u32 v{vA+2}, 0xc000, v{vA}'); e(f'v_add_u32 v{vA+3}, 0xc000, v{vA+1}')
    e('v_bfe_u32 v10, v0, 5, 1')
    e('v_lshlrev_b32 v11, 7, v20'); e('v_lshl_add_u32 v26, v10, 3, v11'); e('v_add_u32 v26, s24, v26')
    e('v_and_b32 v12, 31, v0'); e('v_add_u32 v12, v21, v12'); e('s_lshl_b32 s27, s20, 7'); e('v_add_u32 v12, s27, v12')
    e('v_mul_u32_u24 v12, 3584, v12'); e('v_lshl_add_u32 v27, v10, 4, v11'); e('v_add3_u32 v27, v27, v12, s24')
    e('s_waitcnt lgkmcnt(0)')
    srd(12, 4, 448*1792*2); srd(16, 6, 3584); srd(28, 8, XB, Y2_OFF); srd(32, 8, 2048*3584, H_OFF)
    BI = 88
    def issue(idx):
        s, slot = idx >> 1, (idx % 5)*16384
        if idx & 1 == 0: dma_tile(vW, 12, 24, 64*s*3584, slot, 26, 36)
        else: dma_tile(vH, 28, 25, 128*s, slot, 26, 37)
    for i in range(5): issue(i)
    ACC, FR = 56, 32
    def reads(s, sub, buf):
        slotW = ((2*s) % 5)
        a = vA + (2 if slotW >= 3 else 0); off = (slotW - 3 if slotW >= 3 else slotW)*16384 + sub*2048
        b = FR + 12*buf
        e(f'ds_read_b128 v[{b+8}:{b+11}], v{vB+sub}')
        for mt in range(2):
            e(f'ds_read_b64_tr_b16 v[{b+4*mt}:{b+4*mt+1}], v{a+mt} offset:{off}')
            e(f'ds_read_b64_tr_b16 v[{b+4*mt+2}:{b+4*mt+3}], v{a+mt} offset:{off+512}')
    nb = 0
    for s in range(7):
        outst = min(max(4, 2*s+2), 13) - (2*s+1)
        e(f's_waitcnt vmcnt({2*outst+nb})'); e('s_barrier')
        stamp()
        slotH = ((2*s+1) % 5)*16384
        for q in range(4): e(f'v_add_u32 v{vB+q}, {slotH}, v{vBb+q}')
        reads(s, 0, 0)
        for sub in range(4):
            if sub < 3: reads(s, sub+1, (sub+1) & 1); e('s_waitcnt lgkmcnt(5)')
            else: e('s_waitcnt lgkmcnt(0)')
            b = FR + 12*(sub & 1)
            for mt in range(2):
                c = ACC + 16*mt
                e(f'v_mfma_f32_32x32x16_bf16 v[{c}:{c+15}], v[{b+4*mt}:{b+4*mt+3}], v[{b+8}:{b+11}], ' + ('0' if (s == 0 and sub == 0) else f'v[{c}:{c+15}]'))
            if s >= 1 and sub < 2 and 2*s+3+sub < 14: issue(2*s+3+sub)
            if s == 5 and sub >= 1 and sub < 3:
                mt = sub-1
                for g in range(4): e(f'buffer_load_dwordx2 v[{BI+8*mt+2*g}:{BI+8*mt+2*g+1}], v26, s[16:19], 0 offen offset:{mt*64+g*16}')
                nb += 4
    stamp()
    e(f's_mov_b32 s38, {f2u(GC1)}'); e(f'v_mov_b32 v28, {f2u(GC0)}')
    e('s_waitcnt vmcnt(0)'); e('s_nop 7')
    O = 32
    k = 0
    for mt in range(2):
        c = ACC + 16*mt
        for gp in range(2):
            o = O + 4*(k % 4); k += 1
            for rr in range(4):
                r = 8*gp + 2*rr
                a, b, bb = c+r, c+r+1, BI+8*mt+(r >> 1)
                t0, t1, t2, t3 = [48+4*(rr & 1)+i for i in range(4)]
                pk(t2, a, b); lo(t0, bb); hi(t1, bb); lo(a, t2); hi(b, t2)
                e(f'v_add_f32 v{a}, v{a}, v{t0}'); e(f'v_add_f32 v{b}, v{b}, v{t1}')
                pk(t2, a, b); lo(a, t2); hi(b, t2)
                e(f'v_mul_f32 v{t0}, v{a}, v{a}'); e(f'v_mul_f32 v{t1}, v{b}, v{b}')
                e(f'v_fma_f32 v{t0}, v{t0}, s38, v28'); e(f'v_fma_f32 v{t1}, v{t1}, s38, v28')
                e(f'v_mul_f32 v{t0}, v{a}, v{t0}'); e(f'v_mul_f32 v{t1}, v{b}, v{t1}')
                e(f'v_exp_f32 v{t0}, v{t0}'); e(f'v_exp_f32 v{t1}, v{t1}'); e('s_nop 0')
                e(f'v_add_f32 v{t0}, 1.0, v{t0}'); e(f'v_add_f32 v{t1}, 1.0, v{t1}')
                e(f'v_rcp_f32 v{t0}, v{t0}'); e(f'v_rcp_f32 v{t1}, v{t1}'); e('s_nop 0')
                e(f'v_mul_f32 v{a}, v{a}, v{t0}'); e(f'v_mul_f32 v{b}, v{b}, v{t1}')
                pk(o+rr, a, b)
            e('s_nop 1')
            e(f'v_permlane32_swap_b32 v{o}, v{o+2}'); e(f'v_permlane32_swap_b32 v{o+1}, v{o+3}')
            e(f'buffer_store_dwordx4 v[{o}:{o+3}], v27, s[32:35], 0 offen offset:{mt*64+gp*32}{ST}')
    stamp_end([(0,0),(1,223)])
    e('s_branch L_mid_done')

KSZ, UL0, USZ = 33280, 66560, 7600
def role_conv():
    stamp_begin()
    e('s_load_dwordx2 s[4:5], s[0:1], 64'); e('s_load_dwordx2 s[6:7], s[0:1], 128')
    e('v_lshrrev_b32 v1, 8, v0'); e('s_nop 0'); e('v_readfirstlane_b32 s33, v1')
    e('s_sub_u32 s3, s2, 224'); e('s_lshl_b32 s3, s3, 1'); e('s_add_u32 s24, s3, s33')
    e(f's_mul_i32 s34, s33, {KSZ}'); e(f's_mul_i32 s35, s33, {USZ}'); e(f's_add_u32 s35, s35, {UL0}')
    e('v_and_b32 v23, 255, v0')
    e('v_bfe_u32 v1, v0, 6, 2'); e('v_and_b32 v2, 63, v0')
    e('v_lshlrev_b32 v3, 4, v2'); e('v_lshl_add_u32 v4, v1, 2, v3'); e('v_add_u32 v5, 4160, v4')
    e('v_lshlrev_b32 v6, 4, v23')
    e('v_mul_u32_u24 v7, 8320, v1'); e('v_add3_u32 v7, v7, v3, 48'); e('v_add_u32 v7, s34, v7')
    e('v_lshrrev_b32 v8, 2, v23'); e('v_mul_u32_u24 v8, 80, v8'); e('v_and_b32 v9, 3, v0'); e('v_lshl_add_u32 v8, v9, 4, v8'); e('v_add_u32 v8, s35, v8')
    e('s_waitcnt lgkmcnt(0)')
    srd(8, 4, 896); srd(12, 6, 448*KGC, KG_OFF); srd(16, 6, XB, UT_OFF); srd(20, 6, XB, AT_OFF)
    PF = 64
    e(f's_mul_i32 s25, s24, {KGC}'); e('s_lshl_b32 s26, s24, 12'); e('s_lshl_b32 s27, s24, 1')
    e(f'buffer_load_dwordx4 v[{PF+32}:{PF+35}], v6, s[16:19], s26 offen')
    for c in range(2):
        for it in range(4): e(f'buffer_load_dwordx4 v[{PF+16*c+4*it}:{PF+16*c+4*it+3}], v{4+c}, s[12:15], s25 offen offset:{1024*it}')
    e(f'v_mov_b32 v{PF+37}, 0'); e(f'buffer_load_ushort v{PF+36}, v{PF+37}, s[8:11], s27 offen')
    e('v_mov_b32 v12, 0'); e('v_mov_b32 v13, 0'); e('v_mov_b32 v14, 0'); e('v_mov_b32 v15, 0')
    e('v_lshrrev_b32 v10, 2, v23'); e('v_mul_u32_u24 v10, 4160, v10'); e('v_lshl_add_u32 v10, v9, 4, v10'); e('v_add_u32 v10, s34, v10')
    e('v_cmp_gt_u32 vcc, 32, v23'); e('v_cmp_gt_u32 s[28:29], 3, v9'); e('s_and_b64 vcc, vcc, s[28:29]')
    e('s_and_saveexec_b64 s[30:31], vcc'); e('ds_write_b128 v10, v[12:15]'); e('s_mov_b64 exec, s[30:31]')
    e('v_add_u32 v10, 5120, v6'); e('v_add_u32 v10, s35, v10'); e('v_cmp_gt_u32 vcc, 155, v23')
    e('s_and_saveexec_b64 s[30:31], vcc'); e('ds_write_b128 v10, v[12:15]'); e('s_mov_b64 exec, s[30:31]')
    e('v_and_b32 v10, 31, v0'); e('v_bfe_u32 v11, v0, 5, 1')
    e('v_and_b32 v12, 7, v10'); e('v_mul_u32_u24 v12, 4160, v12'); e('v_lshrrev_b32 v13, 3, v10'); e('v_add_u32 v13, v13, v11')
    e('v_lshl_add_u32 v12, v13, 4, v12'); e('v_lshl_add_u32 v16, v1, 9, v12'); e('v_add_u32 v16, s34, v16')
    e('v_sub_u32 v12, 31, v10'); e('v_mul_u32_u24 v12, 80, v12'); e('v_mul_u32_u24 v13, 640, v1')
    e('v_lshl_add_u32 v13, v11, 4, v13'); e('v_add3_u32 v17, v12, v13, s35')
    e('v_lshrrev_b32 v13, 1, v1'); e('v_sub_u32 v13, 1, v13'); e('v_mul_u32_u24 v13, 2560, v13'); e('v_add_u32 v13, v13, v12')
    e('v_and_b32 v14, 1, v1'); e('v_lshlrev_b32 v15, 5, v14'); e('v_lshl_add_u32 v15, v11, 3, v15')
    e('v_sub_u32 v13, v13, v15'); e('v_add3_u32 v18, v13, 40, s35')
    e('v_lshlrev_b32 v19, 13, v1'); e('v_add3_u32 v19, v19, v3, s34')
    e('v_lshlrev_b32 v20, 11, v1'); e('v_add3_u32 v20, v20, v3, s34')
    e('v_lshrrev_b32 v13, 1, v1'); e('v_lshlrev_b32 v13, 11, v13'); e('v_lshl_add_u32 v13, v10, 6, v13'); e('v_add_u32 v21, v13, v15')
    A0, A1, FR = 32, 48, 64
    e('s_waitcnt vmcnt(9)'); e(f'ds_write_b128 v8, v[{PF+32}:{PF+35}]')
    for c in range(2):
        for it in range(4):
            e(f's_waitcnt vmcnt({8-4*c-it})'); e(f'ds_write_b128 v7, v[{PF+16*c+4*it}:{PF+16*c+4*it+3}] offset:{4160*c+1024*it}')
    e('s_waitcnt vmcnt(0)'); lo(22, PF+36)
    e('s_waitcnt lgkmcnt(0)'); e('s_barrier')
    stamp()
    e('ds_read_b64 v[24:25], v18 offset:16'); e('ds_read_b64 v[26:27], v18')
    def rd(it):
        b = FR + 16*(it % 3); bo = 80*(it >> 1) + 32*(it & 1)
        e(f'ds_read_b128 v[{b}:{b+3}], v16 offset:{32*it}'); e(f'ds_read_b128 v[{b+4}:{b+7}], v17 offset:{bo+2560}')
        e(f'ds_read_b128 v[{b+8}:{b+11}], v17 offset:{bo}'); e(f'ds_read_b128 v[{b+12}:{b+15}], v16 offset:{32*it+2048}')
    rd(0); rd(1)
    for it in range(16):
        if it < 14: rd(it+2)
        e(f's_waitcnt lgkmcnt({4*min(2, 15-it)})')
        b = FR + 16*(it % 3)
        e(f'v_mfma_f32_32x32x16_bf16 v[{A0}:{A0+15}], v[{b}:{b+3}], v[{b+4}:{b+7}], ' + ('0' if it == 0 else f'v[{A0}:{A0+15}]'))
        e(f'v_mfma_f32_32x32x16_bf16 v[{A1}:{A1+15}], v[{b}:{b+3}], v[{b+8}:{b+11}], ' + ('0' if it == 0 else f'v[{A1}:{A1+15}]'))
        e(f'v_mfma_f32_32x32x16_bf16 v[{A1}:{A1+15}], v[{b+12}:{b+15}], v[{b+4}:{b+7}], v[{A1}:{A1+15}]')
    e('s_barrier'); e('s_nop 15')
    stamp()
    for j in range(8): e(f'ds_write_b128 v19, v[{A0+4*j}:{A0+4*j+3}] offset:{1024*j}')
    e('s_waitcnt lgkmcnt(0)'); e('s_barrier')
    for jj in range(2):
        for w in range(4): e(f'ds_read_b128 v[{FR+16*jj+4*w}:{FR+16*jj+4*w+3}], v20 offset:{8192*w+1024*jj}')
    for jj in range(2):
        e(f's_waitcnt lgkmcnt({4*(1-jj)})')
        b = FR + 16*jj; u = 24 + 2*jj
        for i in range(4):
            e(f'v_add_f32 v{b+i}, v{b+i}, v{b+4+i}'); e(f'v_add_f32 v{b+8+i}, v{b+8+i}, v{b+12+i}')
        for i in range(4): e(f'v_add_f32 v{b+i}, v{b+i}, v{b+8+i}')
        pk(b+4, b, b+1); pk(b+5, b+2, b+3)
        lo(b, b+4); hi(b+1, b+4); lo(b+2, b+5); hi(b+3, b+5)
        hi(b+8, u+1); lo(b+9, u+1); hi(b+10, u); lo(b+11, u)
        for i in range(4): e(f'v_mul_f32 v{b+8+i}, v{b+8+i}, v22')
        pk(b+4, b+8, b+9); pk(b+5, b+10, b+11)
        lo(b+8, b+4); hi(b+9, b+4); lo(b+10, b+5); hi(b+11, b+5)
        for i in range(4): e(f'v_add_f32 v{b+i}, v{b+i}, v{b+8+i}')
        pk(28+2*jj, b, b+1); pk(29+2*jj, b+2, b+3)
    e('s_nop 1'); e('v_permlane32_swap_b32 v28, v30'); e('v_permlane32_swap_b32 v29, v31')
    e('v_lshl_add_u32 v21, v11, 3, v21')
    e(f'buffer_store_dwordx4 v[28:31], v21, s[20:23], s26 offen{ST}')
    stamp_end([(2,224),(3,447)])

def kernel_mid():
    kstart('mid_kernel')
    e('s_cmp_ge_u32 s2, 448'); e('s_cbranch_scc1 L_mid_done')
    e('s_cmp_ge_u32 s2, 224'); e('s_cbranch_scc1 L_conv')
    role_gemm1()
    lab('L_conv')
    role_conv()
    lab('L_mid_done')
    e('s_endpgm')

def kernel_fin():
    kstart('fin_kernel')
    e('s_cmp_ge_u32 s2, 224'); e('s_cbranch_scc1 L_fin_done')
    stamp_begin()
    e('s_load_dwordx2 s[4:5], s[0:1], 0'); e('s_load_dwordx4 s[8:11], s[0:1], 96'); e('s_load_dwordx2 s[6:7], s[0:1], 112'); e('s_load_dwordx2 s[44:45], s[0:1], 128')
    e('s_and_b32 s20, s2, 7'); e('s_lshr_b32 s21, s2, 3'); e('s_mul_i32 s22, s21, 37'); e('s_lshr_b32 s22, s22, 8')
    e('s_mul_i32 s23, s22, 7'); e('s_sub_u32 s21, s21, s23'); e('s_lshl_b32 s20, s20, 2'); e('s_add_u32 s20, s20, s22')
    e('s_lshl_b32 s24, s21, 7'); e(f's_mul_i32 s25, s20, {64*3584}')
    wave_sW(26)
    vW, vH = 2, 4
    dma_voffs(896, 3584, vW, vH, 10, 64*896, 128)
    e('v_bfe_u32 v20, v0, 7, 1'); e('v_bfe_u32 v21, v0, 6, 1'); e('v_lshlrev_b32 v22, 5, v21'); e('v_lshrrev_b32 v23, 8, v0')
    vAb, vBb, vA, vB = 6, 16, 7, 24
    frag_addrs(vAb, vBb, 20, 22, 10)
    e('v_lshlrev_b32 v10, 13, v23'); e(f'v_add_u32 v{vAb}, v{vAb}, v10')
    for q in range(4): e(f'v_add_u32 v{vBb+q}, v{vBb+q}, v10')
    e('v_bfe_u32 v10, v0, 5, 1'); e('v_and_b32 v12, 31, v0'); e('v_add_u32 v12, v12, v22')
    e('v_lshlrev_b32 v11, 5, v20'); e('v_lshl_add_u32 v11, v23, 4, v11'); e('v_lshl_add_u32 v11, v10, 2, v11')
    e('v_lshlrev_b32 v29, 7, v11'); e('v_lshl_add_u32 v29, v12, 1, v29'); e('v_add_u32 v29, 0x20000, v29')
    e('v_lshl_add_u32 v28, v11, 1, s24')
    e('s_lshl_b32 s27, s20, 6'); e('v_add_u32 v12, s27, v12'); e('v_mul_u32_u24 v13, 896, v12'); e('v_add_u32 v30, v13, v28')
    e('v_lshl_add_u32 v31, v10, 3, v30')
    e('v_lshrrev_b32 v13, 3, v0'); e('v_lshlrev_b32 v13, 12, v13'); e('v_and_b32 v14, 7, v0'); e('v_lshl_add_u32 v8, v14, 4, v13')
    e('s_lshl_b32 s48, s21, 18'); e('s_lshl_b32 s49, s20, 7'); e('s_add_u32 s48, s48, s49')
    e('v_and_b32 v13, 255, v0'); e('v_lshlrev_b32 v13, 4, v13')
    e('v_lshl_add_u32 v9, v23, 13, v13'); e('v_xor_b32 v15, 0x2000, v9')
    e('s_waitcnt lgkmcnt(0)')
    srd(12, 8, 1792*896); srd(16, 10, 896); srd(28, 44, 2048*3584, H_OFF); srd(32, 44, XB, AT_OFF); srd(36, 4, XB); srd(40, 6, XB)
    def issue(s, part):
        slot = (s % 4)*32768
        if part == 0: dma_tile(vW, 12, 24, 128*s*896, slot, 26, 46)
        else: dma_tile(vH, 28, 25, 256*s, slot+16384, 26, 47)
    for s in range(3): issue(s, 0); issue(s, 1)
    XR, B2 = 80, 84
    ACC, FR = 32, 48
    def reads(sub):
        b = FR + 8*sub
        e(f'ds_read_b64_tr_b16 v[{b}:{b+1}], v{vA} offset:{sub*2048}'); e(f'ds_read_b64_tr_b16 v[{b+2}:{b+3}], v{vA} offset:{sub*2048+512}')
        e(f'ds_read_b128 v[{b+4}:{b+7}], v{vB+sub} offset:16384')
    nx = 0
    for s in range(14):
        outst = min(s+2, 13) - s
        e(f's_waitcnt vmcnt({4*outst+(nx if s < 13 else 0)})'); e('s_barrier')
        if s % 2 == 0: stamp()
        slot = (s % 4)*32768
        e(f'v_add_u32 v{vA}, {slot}, v{vAb}')
        for q in range(4): e(f'v_add_u32 v{vB+q}, {slot}, v{vBb+q}')
        for sub in range(4): reads(sub)
        for sub in range(4):
            b = FR + 8*sub
            e(f's_waitcnt lgkmcnt({9-3*sub})')
            e(f'v_mfma_f32_32x32x16_bf16 v[{ACC}:{ACC+15}], v[{b}:{b+3}], v[{b+4}:{b+7}], ' + ('0' if (s == 0 and sub == 0) else f'v[{ACC}:{ACC+15}]'))
            if sub < 2 and s+3 < 14: issue(s+3, sub)
            if s == 11 and sub == 0:
                e('s_lshr_b32 s49, s26, 1'); e('s_add_u32 m0, s49, 0x20000'); e('s_nop 0')
                e('buffer_load_dwordx4 v8, s[32:35], s48 offen lds')
                for g in range(2): e(f'buffer_load_dwordx2 v[{XR+2*g}:{XR+2*g+1}], v30, s[36:39], 0 offen offset:{16*g}')
                for g in range(2): e(f'buffer_load_dwordx2 v[{B2+2*g}:{B2+2*g+1}], v28, s[16:19], 0 offen offset:{16*g}')
                nx = 5
    stamp()
    T, AV = 64, 72
    for g in range(2):
        for j in range(4): e(f'ds_read_u16 v{AV+4*g+j}, v29 offset:{(8*g+j)*128}')
    for g in range(2):
        lo(T+4*g, XR+2*g); hi(T+4*g+1, XR+2*g); lo(T+4*g+2, XR+2*g+1); hi(T+4*g+3, XR+2*g+1)
    e('s_waitcnt lgkmcnt(0)')
    for i in range(8):
        e(f'v_lshlrev_b32 v{AV+i}, 16, v{AV+i}'); e(f'v_add_f32 v{T+i}, v{T+i}, v{AV+i}')
    for h in range(4):
        pk(XR+h, T+2*h, T+2*h+1); lo(T+2*h, XR+h); hi(T+2*h+1, XR+h)
    e('v_readfirstlane_b32 s50, v23'); e('s_nop 3'); e('s_cmp_eq_u32 s50, 0'); e('s_cbranch_scc0 L_fin_g1')
    e(f'ds_write_b128 v9, v[{ACC+8}:{ACC+11}]'); e(f'ds_write_b128 v9, v[{ACC+12}:{ACC+15}] offset:4096')
    e('s_branch L_fin_j')
    lab('L_fin_g1')
    e(f'ds_write_b128 v9, v[{ACC}:{ACC+3}]'); e(f'ds_write_b128 v9, v[{ACC+4}:{ACC+7}] offset:4096')
    e('s_nop 1')
    for i in range(8): e(f'v_mov_b32 v{ACC+i}, v{ACC+8+i}')
    lab('L_fin_j')
    e('s_waitcnt lgkmcnt(0)'); e('s_barrier')
    e(f'ds_read_b128 v[48:51], v15'); e(f'ds_read_b128 v[52:55], v15 offset:4096')
    e('s_waitcnt lgkmcnt(0)')
    O = 56
    for i in range(4):
        a, b = ACC+2*i, ACC+2*i+1
        e(f'v_add_f32 v{a}, v{a}, v{48+2*i}'); e(f'v_add_f32 v{b}, v{b}, v{49+2*i}')
        pk(60, a, b); lo(a, 60); hi(b, 60); lo(61, B2+i); hi(62, B2+i)
        e(f'v_add_f32 v{a}, v{a}, v61'); e(f'v_add_f32 v{b}, v{b}, v62')
        pk(60, a, b); lo(a, 60); hi(b, 60)
        e(f'v_add_f32 v{a}, v{a}, v{T+2*i}'); e(f'v_add_f32 v{b}, v{b}, v{T+2*i+1}')
        pk(O+i, a, b)
    e('s_nop 1')
    e(f'v_permlane32_swap_b32 v{O}, v{O+2}'); e(f'v_permlane32_swap_b32 v{O+1}, v{O+3}')
    e(f'buffer_store_dwordx4 v[{O}:{O+3}], v31, s[40:43], 0 offen')
    stamp_end([(0,0),(1,100),(2,200),(3,223)])
    lab('L_fin_done')
    e('s_endpgm')

def kd(name, vg):
    L.append('.p2align 6'); L.append(f'.amdhsa_kernel {name}')
    for s in (f'.amdhsa_next_free_vgpr {vg}', '.amdhsa_next_free_sgpr %d' % (96 if DBG else 64), f'.amdhsa_accum_offset {(vg+3)//4*4}', '.amdhsa_group_segment_fixed_size 0',
              '.amdhsa_kernarg_size 136', '.amdhsa_user_sgpr_count 2', '.amdhsa_user_sgpr_kernarg_segment_ptr 1', '.amdhsa_system_sgpr_workgroup_id_x 1'):
        L.append('  ' + s)
    L.append('.end_amdhsa_kernel')

if __name__ == '__main__':
    ref = open('parallel_sum__ssm_conv_s4__mixer_channel_mlp__prompt.s.ref').read().split('\n')
    hdr = [l for l in ref if l.startswith(';') and '@launch' not in l and 'Override' not in l and 'grid=ceil' not in l]
    L.extend(hdr)
    L.append('; @launch kernel=prep_kernel grid=(576,1,1) block=(256,1,1) lds=54272')
    L.append('; @launch kernel=mid_kernel grid=(448,1,1) block=(512,1,1) lds=81920')
    L.append('; @launch kernel=fin_kernel grid=(224,1,1) block=(512,1,1) lds=139264')
    L.append('.amdgcn_target "amdgcn-amd-amdhsa--gfx950"'); L.append('.text')
    kernel_prep(); kernel_mid(); kernel_fin()
    L.append('.section .rodata,"a"')
    kd('prep_kernel', 120); kd('mid_kernel', 112); kd('fin_kernel', 88)
    open('parallel_sum__ssm_conv_s4__mixer_channel_mlp__prompt.s', 'w').write('\n'.join(L) + '\n')
```
